```python
import torch

def _softmax(x, axis=-1):
    return torch.softmax(x, dim=axis)
def _gelu(x):
    return torch.nn.functional.gelu(x, approximate="tanh")
def _silu(x):
    return torch.nn.functional.silu(x)
def _sigmoid(x):
    return torch.sigmoid(x)
def _layernorm(x, axis=-1, eps=1e-5):
    m = x.mean(dim=axis, keepdim=True)
    v = x.var(dim=axis, keepdim=True, unbiased=False)
    return (x - m) / torch.sqrt(v + eps)
def _scatter_add(tgt, idx, src, axis=0):
    return tgt.clone().index_add_(axis, idx, src)
def _segment_sum(src, seg, n):
    out = torch.zeros((n,) + src.shape[1:], dtype=src.dtype)
    return out.index_add_(0, seg, src)
def _pad(x, pw):
    flat = tuple(v for pair in reversed(pw) for v in pair)
    return torch.nn.functional.pad(x, flat)

kernel_name = 'standalone__low_rank_proj_linformer__decode'

def setup_inputs():

    _w = (lambda a: (lambda t: t.to(torch.bfloat16) if t.is_floating_point() else t)(torch.as_tensor(a)))
    B, H, Sq, Skv, Dh, R = 2, 32, 1, 16384, 128, 64
    return {
        "q": _w((lambda *s: torch.randn(*s, dtype=torch.bfloat16) * 0.8)(B, H, Sq, Dh)),
        "k": _w((lambda *s: torch.randn(*s, dtype=torch.bfloat16) * 0.8)(B, H, Skv, Dh)),
        "v": _w((lambda *s: torch.randn(*s, dtype=torch.bfloat16) * 0.05)(B, H, Skv, Dh)),
        "e_proj": _w((lambda *s: torch.randn(*s, dtype=torch.bfloat16) * 0.8)(R, Skv) * (Skv ** -0.5)),
        "f_proj": _w((lambda *s: torch.randn(*s, dtype=torch.bfloat16) * 0.05)(R, Skv) * (Skv ** -0.5)),
    }

def reference(q, k, v, e_proj, f_proj):
    B, H, Sq, Dh = q.shape
    kp = torch.einsum("rn,bhnd->bhrd", e_proj, k)
    vp = torch.einsum("rn,bhnd->bhrd", f_proj, v)
    scores = torch.einsum("bhqd,bhrd->bhqr", q, kp) * (Dh ** -0.5)
    p = _softmax(scores, axis=-1)
    o = torch.einsum("bhqr,bhrd->bhqd", p, vp)
    return o
```

```python
import sys
KN = "standalone__low_rank_proj_linformer__decode_kernel"

HEADER = """; Kernarg layout for this problem (64 bytes, ptrs only, base s[0:1]):
"""

def gen(D=5, DV=None, stamps=0, epol="nt", fpol="nt", hthr=2, prio=1, slp=8, oslp=1, gslp=8, fslp=2,
        stpol="sc1", ldpol="sc1", kvpol="nt", qpol=""):
    DV = DV or D
    L = []
    A = L.append
    ESTR = 2064
    SW0 = 64 * ESTR
    SWS = 4224
    PSTR = 2112
    OB0 = SW0 + 4 * SWS
    SC0 = OB0 + 8192
    PD0 = SC0 + 1024
    CN0 = PD0 + 2048
    LDS = CN0 + 128
    cS, cE, cP, cW = 0, 32, 48, 64
    WS_EP = 0
    WS_SC = 1 << 16
    WS_O = 1 << 20
    lab = [0]
    def newlab(p):
        lab[0] += 1
        return f"L_{p}{lab[0]}"
    def lds_wait(off, target, vaddr, vt, st, sc, sleep=2):
        l = newlab("w"); d = newlab("wd")
        A(f"s_mov_b32 {sc}, 0x40000")
        A(f"{l}:")
        A(f"ds_read_b32 {vt}, {vaddr} offset:{off}")
        A("s_waitcnt lgkmcnt(0)")
        A(f"v_readfirstlane_b32 {st}, {vt}")
        A("s_nop 0")
        A(f"s_cmp_ge_u32 {st}, {target}")
        A(f"s_cbranch_scc1 {d}")
        A(f"s_sub_u32 {sc}, {sc}, 1")
        A(f"s_cbranch_scc1 {d}")
        A(f"s_sleep {sleep}")
        A(f"s_branch {l}")
        A(f"{d}:")
    def lds_inc(off, vaddr, vone):
        A("s_mov_b64 exec, 1")
        A(f"ds_add_u32 {vaddr}, {vone} offset:{off}")
        A("s_mov_b64 exec, -1")
    def stamp(i):
        if stamps and i < stamps:
            A(f"s_memrealtime s[{70+2*i}:{71+2*i}]")
    def stamp_store(idx):
        A("s_waitcnt lgkmcnt(0)")
        A("s_add_u32 s90, s18, 0x20000000\ns_addc_u32 s91, s19, 0")
        A("s_lshl_b32 s37, s2, 7\nv_mov_b32 v9, s37")
        for i in idx:
            A(f"v_mov_b32 v10, s{70+2*i}\nv_mov_b32 v11, s{71+2*i}")
            A("s_mov_b64 exec, 1")
            A(f"global_store_dwordx2 v9, v[10:11], s[90:91] offset:{8*i}")
            A("s_mov_b64 exec, -1")
            A("s_nop 1")

    A(HEADER + f"; @launch grid=(256,1,1) block=(512,1,1) lds={LDS}")
    A('.amdgcn_target "amdgcn-amd-amdhsa--gfx950"')
    A(".text")
    A(f".globl {KN}\n.p2align 8\n.type {KN},@function\n{KN}:")
    A("s_cmp_ge_u32 s2, 256")
    A("s_cbranch_scc1 L_done")
    A("s_load_dwordx16 s[4:19], s[0:1], 0")
    stamp(0)
    A("v_lshrrev_b32 v1, 6, v0")
    A("v_and_b32 v0, 63, v0")
    A("v_readfirstlane_b32 s3, v1")
    A("s_and_b32 s20, s2, 15")
    A("s_lshr_b32 s21, s2, 4")
    A("v_lshrrev_b32 v4, 4, v0")
    A("v_and_b32 v5, 15, v0")
    A(f"v_mov_b32 v6, {CN0}")
    A("v_mov_b32 v7, 1")
    A("v_lshlrev_b32 v2, 4, v0")
    A("s_cmp_ge_u32 s3, 4")
    A("s_cbranch_scc1 L_helper")

    RING = 16; Q = 48; P = 64; X0, X1, Y, T = 72, 73, 74, 75
    M2 = 76; SA = 77; WA = 78; W = 79; ACC = 80; TM = 88; OA = 96; CA = 97
    A("v_add_u32 v3, 4096, v2")
    A("v_lshlrev_b32 v8, 4, v5")
    A("s_lshl_b32 s36, s21, 24")
    A("s_lshl_b32 s37, s20, 18")
    A("s_add_u32 s36, s36, s37")
    A("s_lshl_b32 s37, s3, 13")
    A("s_add_u32 s36, s36, s37")
    A("s_lshl_b32 s39, s21, 10")
    A("s_waitcnt lgkmcnt(0)")
    A("s_mov_b32 s24, s6\ns_mov_b32 s25, s7\ns_mov_b32 s26, 0x10000000\ns_mov_b32 s27, 0x20000")
    A("s_mov_b32 s32, s4\ns_mov_b32 s33, s5\ns_mov_b32 s34, 16384\ns_mov_b32 s35, 0x20000")
    def kvload(idx, srd, soff):
        s = idx % 8
        A(f"buffer_load_dwordx4 v[{RING+4*s}:{RING+4*s+3}], v{2 + s//4}, s[{srd}:{srd+3}], {soff} offen offset:{(s%4)*1024} {kvpol}")
    for h in range(4):
        A(f"buffer_load_dwordx4 v[{Q+4*h}:{Q+4*h+3}], v8, s[32:35], s39 offen offset:{256*h} {qpol}")
    for u in range(D): kvload(u, 24, "s36")
    A("s_mov_b32 s28, s8\ns_mov_b32 s29, s9\ns_mov_b32 s30, 0x10000000\ns_mov_b32 s31, 0x20000")
    if prio: A(f"s_setprio {prio}")
    A("v_and_b32 v9, 1, v0")
    A("v_sub_u32 v10, 0, v9")
    A(f"v_and_b32 v{M2}, 0xffff0000, v10")
    A(f"v_mul_u32_u24 v{SA}, {PSTR}, v9")
    A("v_bfe_u32 v10, v0, 2, 2")
    A("v_lshlrev_b32 v10, 2, v10")
    A("v_add_u32 v10, v10, v4")
    A("s_lshl_b32 s37, s3, 5")
    A("v_add_u32 v10, s37, v10")
    A(f"v_lshl_add_u32 v{SA}, v10, 1, v{SA}")
    A(f"v_add_u32 v{SA}, {SW0}, v{SA}")
    A("v_and_b32 v10, 7, v0")
    A("v_lshlrev_b32 v10, 2, v10")
    A("v_add_u32 v10, v10, v4")
    A("v_add_u32 v10, s37, v10")
    A(f"v_lshlrev_b32 v{WA}, 2, v10")
    A(f"v_add_u32 v{WA}, {SW0}, v{WA}")
    A("v_lshlrev_b32 v10, 5, v5")
    A("v_lshl_add_u32 v10, v4, 3, v10")
    A("s_lshl_b32 s37, s3, 9")
    A("v_add_u32 v10, s37, v10")
    A(f"v_add_u32 v{OA}, {OB0}, v10")
    for k in range(8): A(f"v_mov_b32 v{ACC+k}, 0")
    A(f"v_mov_b32 v{CA}, v6")
    A("s_mov_b32 s40, 0xffff0000")
    A("s_barrier")
    A("s_mov_b32 s38, 0")
    A("s_mov_b32 s41, s36")

    def next_off():
        A("s_add_u32 s43, s38, 1")
        A("s_lshr_b32 s44, s43, 3")
        A("s_and_b32 s43, s43, 7")
        A("s_lshl_b32 s44, s44, 22")
        A("s_lshl_b32 s43, s43, 15")
        A("s_add_u32 s42, s36, s44")
        A("s_add_u32 s42, s42, s43")
    def stage_done():
        lds_inc(cS, f"v{CA}", "v7")
        A(f"v_add_u32 v{CA}, 4, v{CA}")

    def kstep(cur_srd, nxt_srd, nxt_off, Din, Dout):
        issued = Din
        for u in range(8):
            A(f"s_waitcnt vmcnt({issued - u - 1})")
            want = u + 1 + (Din if u < 7 else Dout) if Din == Dout else u + 1 + Din + (Dout - Din) * (u + 1) // 8
            while issued < want:
                if issued < 8: kvload(issued, cur_srd, "s41")
                else: kvload(issued, nxt_srd, nxt_off)
                issued += 1
            r = RING + 4*u
            A(f"v_dot2_f32_bf16 v{P+u}, v{r}, v{Q}, 0")
            for m in range(1, 4):
                A(f"v_dot2_f32_bf16 v{P+u}, v{r+m}, v{Q+m}, v{P+u}")
            if u % 4 == 3:
                e = u // 4; p = P + 4*e
                A(f"v_add_f32_dpp v{X0}, v{p}, v{p} row_ror:8 row_mask:0xf bank_mask:0x3")
                A(f"v_add_f32_dpp v{X1}, v{p+1}, v{p+1} row_ror:8 row_mask:0xf bank_mask:0x3")
                A("s_nop 0")
                A(f"v_add_f32_dpp v{X0}, v{p+2}, v{p+2} row_ror:8 row_mask:0xf bank_mask:0xc")
                A(f"v_add_f32_dpp v{X1}, v{p+3}, v{p+3} row_ror:8 row_mask:0xf bank_mask:0xc")
                A(f"s_nop 0")
                A(f"v_add_f32_dpp v{Y}, v{X0}, v{X0} row_half_mirror row_mask:0xf bank_mask:0x5")
                A("s_nop 1")
                A(f"v_add_f32_dpp v{Y}, v{X1}, v{X1} row_half_mirror row_mask:0xf bank_mask:0xa")
                A("s_nop 1")
                A(f"v_add_f32_dpp v{Y}, v{Y}, v{Y} quad_perm:[1,0,3,2] row_mask:0xf bank_mask:0xf")
                A("s_nop 1")
                A(f"v_add_f32_dpp v{Y}, v{Y}, v{Y} quad_perm:[2,3,0,1] row_mask:0xf bank_mask:0xf")
                A(f"v_and_b32 v{T}, v{Y}, v{M2}")
                A(f"v_sub_f32 v{T}, v{Y}, v{T}")
                A(f"ds_write_b16_d16_hi v{SA}, v{T} offset:{32*e}")
        assert issued == 8 + Dout
        A(f"v_add_u32 v{SA}, 256, v{SA}")

    A("L_kloop:")
    next_off()
    kstep(24, 24, "s42", D, D)
    A("s_mov_b32 s41, s42")
    A("s_add_u32 s38, s38, 1")
    A("s_and_b32 s43, s38, 7")
    A("s_cbranch_scc1 L_knohead")
    stage_done()
    A(f"v_add_u32 v{SA}, {SWS - 2048}, v{SA}")
    for k in range(12): A(f"v_mov_b32 v{Q+k}, v{Q+4+k}")
    A("L_knohead:")
    A("s_cmp_lt_u32 s38, 31")
    A("s_cbranch_scc1 L_kloop")
    kstep(24, 28, "s36", D, DV)
    stage_done()
    stamp(1)
    def vstep(last):
        A(f"ds_read_b32 v{W}, v{WA}")
        for u in range(8):
            if last and u + DV >= 8:
                A(f"s_waitcnt vmcnt({7-u})")
            else:
                A(f"s_waitcnt vmcnt({DV-1})")
                if u + DV < 8: kvload(u + DV, 28, "s41")
                else: kvload(u + DV, 28, "s42")
            if u == 0: A("s_waitcnt lgkmcnt(0)")
            r = RING + 4*u
            for m in range(4):
                A(f"v_lshlrev_b32 v{TM+2*m}, 16, v{r+m}")
                A(f"v_and_b32 v{TM+2*m+1}, s40, v{r+m}")
            for k in range(8):
                A(f"v_fmac_f32_dpp v{ACC+k}, v{W}, v{TM+k} row_newbcast:{u} row_mask:0xf bank_mask:0xf")
        A(f"v_add_u32 v{WA}, 512, v{WA}")
    def vhead_end():
        A("s_nop 1")
        for k in range(4): A(f"v_permlane32_swap_b32 v{ACC+k}, v{ACC+k+4}")
        for k in range(4): A(f"v_add_f32 v{ACC+k}, v{ACC+k}, v{ACC+k+4}")
        A("s_nop 0")
        for k in range(2): A(f"v_permlane16_swap_b32 v{ACC+k}, v{ACC+k+2}")
        for k in range(2): A(f"v_add_f32 v{TM+k}, v{ACC+k}, v{ACC+k+2}")
        A(f"ds_write_b64 v{OA}, v[{TM}:{TM+1}]")
        stage_done()
    A("s_mov_b32 s38, 0")
    A("s_mov_b32 s41, s36")
    A("L_vhead:")
    lds_wait(cW - 16, 4, f"v{CA}", f"v{T}", "s43", "s46")
    A("L_vloop:")
    next_off()
    vstep(False)
    A("s_mov_b32 s41, s42")
    A("s_add_u32 s38, s38, 1")
    A("s_cmp_eq_u32 s38, 31")
    A("s_cbranch_scc1 L_vlast")
    A("s_and_b32 s43, s38, 7")
    A("s_cbranch_scc1 L_vloop")
    vhead_end()
    for k in range(8): A(f"v_mov_b32 v{ACC+k}, 0")
    A(f"v_add_u32 v{WA}, {SWS - 4096}, v{WA}")
    A(f"v_add_u32 v{OA}, 2048, v{OA}")
    A("s_branch L_vhead")
    A("L_vlast:")
    vstep(True)
    vhead_end()
    if stamps:
        stamp(2)
        A("s_cmp_lg_u32 s3, 0\ns_cbranch_scc1 L_done")
        stamp_store(range(min(stamps, 3)))
    A("s_endpgm")

    F0 = 128
    EA, SB, PA, WW, M = 10, 11, 12, 13, 16
    TG = 20
    AC = 24
    BB = 40
    RA = 56
    PV = 88
    G = 56
    A("L_helper:")
    A("s_sub_u32 s22, s3, 4")
    A("v_mov_b32 v8, 0")
    A("v_and_b32 v9, 31, v0")
    A("v_lshl_add_u32 v9, v9, 2, v6")
    A("ds_write_b32 v9, v8")
    A("s_waitcnt lgkmcnt(0)")
    A("s_barrier")
    A("s_mov_b32 s32, s18\ns_mov_b32 s33, s19\ns_mov_b32 s34, 0x40000000\ns_mov_b32 s35, 0x20000")
    A("s_lshl_b32 s47, s21, 8")
    A(f"buffer_load_dword v{TG}, off, s[32:35], s47 sc1")
    A("s_mov_b32 s24, s10\ns_mov_b32 s25, s11\ns_mov_b32 s26, 0x200000\ns_mov_b32 s27, 0x20000")
    A("s_mov_b32 s28, s12\ns_mov_b32 s29, s13\ns_mov_b32 s30, 0x200000\ns_mov_b32 s31, 0x20000")
    A("s_mov_b32 s52, s14\ns_mov_b32 s53, s15\ns_mov_b32 s54, 16384\ns_mov_b32 s55, 0x20000")
    A("s_lshl_b32 s36, s22, 19")
    A("s_lshl_b32 s37, s20, 11")
    A("s_add_u32 s36, s36, s37")
    A(f"s_mul_i32 s38, s22, {16*ESTR}")
    for rr in range(16):
        A(f"s_add_u32 m0, s38, {rr*ESTR}")
        for hf in range(2):
            A(f"s_waitcnt vmcnt({hthr-1})")
            A(f"buffer_load_dwordx4 v2, s[24:27], s36 offen offset:{1024*hf} {epol} lds")
        A("s_add_u32 s36, s36, 32768")
    A("v_lshlrev_b32 v3, 19, v4")
    A("v_lshl_add_u32 v3, v5, 4, v3")
    A("s_lshl_b32 s36, s22, 9")
    A("s_add_u32 s36, s36, s37")
    for t in range(16):
        for tau in range(2):
            A(f"s_waitcnt vmcnt({hthr-1})")
            r = F0 + 64*tau + 4*t
            A(f"buffer_load_dwordx4 v[{r}:{r+3}], v3, s[28:31], s36 offen offset:{256*tau} {fpol}")
        A("s_add_u32 s36, s36, 32768")
    A(f"v_readfirstlane_b32 s56, v{TG}\ns_nop 0")
    A("s_add_u32 s56, s56, 1")
    for k in range(4):
        A(f"s_bfe_u32 s43, s56, {(8 << 16) | (8*k)}")
        A(f"v_mov_b32 v{TG+k}, s43")
    A("s_mov_b32 s57, 0xffffff00")
    A("s_mov_b32 s58, 0x0c0c0400")
    A("s_mov_b32 s59, 0x04000c0c")
    A(f"s_mul_i32 s36, s22, {16*ESTR}")
    A(f"v_mul_u32_u24 v{EA}, {ESTR}, v5")
    A(f"v_lshl_add_u32 v{EA}, v4, 4, v{EA}")
    A(f"v_add_u32 v{EA}, s36, v{EA}")
    A("v_and_b32 v8, 1, v0")
    A(f"v_mul_u32_u24 v{SB}, {PSTR}, v8")
    A("v_bfe_u32 v8, v0, 1, 1")
    A(f"v_mul_u32_u24 v8, {SWS}, v8")
    A(f"v_add_u32 v{SB}, v{SB}, v8")
    A(f"v_lshl_add_u32 v{SB}, v4, 4, v{SB}")
    A(f"v_add_u32 v{SB}, {SW0}, v{SB}")
    A("v_bfe_u32 v8, v0, 3, 1")
    A(f"v_lshlrev_b32 v{PA}, 8, v8")
    A(f"v_lshl_add_u32 v{PA}, v4, 6, v{PA}")
    A(f"v_add_u32 v{PA}, {PD0}, v{PA}")
    A("v_and_b32 v8, 7, v0")
    A(f"v_lshlrev_b32 v{WW}, 2, v8")
    A(f"v_lshl_add_u32 v{WW}, v4, 7, v{WW}")
    A("s_lshl_b32 s36, s22, 10")
    A(f"v_add_u32 v{WW}, s36, v{WW}")
    A(f"v_add_u32 v{WW}, {SW0}, v{WW}")
    A("v_and_b32 v9, 1, v0")
    A("v_lshlrev_b32 v9, 4, v9")
    A("v_mov_b32 v14, 0xffff")
    A("v_lshlrev_b32 v9, v9, v14")
    A("v_bfe_u32 v8, v0, 1, 2")
    for m in range(4):
        A(f"v_cmp_eq_u32 vcc, {m}, v8")
        A("s_nop 1")
        A(f"v_cndmask_b32 v{M+m}, 0, v9, vcc")
    A("s_lshl_b32 s60, s21, 14")
    A(f"s_add_u32 s60, s60, {WS_SC}")
    A("s_lshl_b32 s61, s21, 15")
    A(f"s_add_u32 s61, s61, {WS_O}")
    if stamps > 4: stamp(4)

    def put_tags(r):
        for k in range(4): A(f"v_and_or_b32 v{r+k}, v{r+k}, s57, v{TG+k}")
    def check_tags(r, t0, t1, dst):
        A(f"v_perm_b32 v{t0}, v{r+1}, v{r}, s58")
        A(f"v_perm_b32 v{t1}, v{r+3}, v{r+2}, s59")
        A(f"v_or_b32 v{t0}, v{t0}, v{t1}")
        A(f"v_cmp_ne_u32 {dst}, s56, v{t0}")

    def epass(a):
        lds_wait(cS + 8*a, 4, "v6", "v8", "s43", "s46", sleep=slp)
        lds_wait(cS + 8*a + 4, 4, "v6", "v8", "s43", "s46", sleep=slp)
        for k in range(4): A(f"v_mov_b32 v{AC+k}, 0")
        for ch in range(8):
            for kk in range(4):
                A(f"ds_read_b128 v[{RA+8*kk}:{RA+8*kk+3}], v{EA} offset:{(4*ch+kk)*64}")
                A(f"ds_read_b128 v[{RA+8*kk+4}:{RA+8*kk+7}], v{SB} offset:{2*a*SWS + (4*ch+kk)*64}")
            for kk in range(4):
                A(f"s_waitcnt lgkmcnt({6-2*kk})")
                A(f"v_mfma_f32_16x16x32_bf16 v[{AC}:{AC+3}], v[{RA+8*kk}:{RA+8*kk+3}], v[{RA+8*kk+4}:{RA+8*kk+7}], v[{AC}:{AC+3}]")
        A("s_lshl_b32 s36, s22, 6")
        A("v_bfe_u32 v9, v0, 1, 1")
        A("v_lshlrev_b32 v8, 4, v4")
        A("v_lshl_add_u32 v8, v9, 8, v8")
        A("v_add_u32 v8, s36, v8")
        A(f"v_add_u32 v8, {SC0 + 512*a}, v8")
        A("s_nop 4")
        for k in range(4):
            A(f"v_add_f32_dpp v{AC+4+k}, v{AC+k}, v{AC+k} quad_perm:[1,0,3,2] row_mask:0xf bank_mask:0xf")
        A(f"ds_write_b128 v8, v[{AC+4}:{AC+7}]")
        A("s_mov_b64 exec, 1")
        A(f"ds_add_rtn_u32 v8, v6, v7 offset:{cE + 4*a}")
        A("s_mov_b64 exec, -1")
        A("s_waitcnt lgkmcnt(0)")
        A("v_readfirstlane_b32 s43, v8")
        sk = newlab("nopub")
        A("s_nop 0")
        A(f"s_cmp_lg_u32 s43, 3")
        A(f"s_cbranch_scc1 {sk}")
        A(f"v_add_u32 v9, {SC0 + 512*a}, v2")
        A("s_mov_b32 exec_hi, 0")
        A(f"ds_read_b128 v[{G}:{G+3}], v9")
        A("s_lshl_b32 s38, s20, 9")
        A("s_add_u32 s37, s60, s38")
        A(f"s_add_u32 s37, s37, {8192*a}")
        A("s_waitcnt lgkmcnt(0)")
        put_tags(G)
        A(f"buffer_store_dwordx4 v[{G}:{G+3}], v2, s[32:35], s37 offen {stpol}")
        A("s_mov_b64 exec, -1")
        A("s_nop 1")
        A(f"{sk}:")

    def pw(a):
        sk = newlab("nop")
        A(f"s_cmp_lg_u32 s22, {a}")
        A(f"s_cbranch_scc1 {sk}")
        A(f"s_add_u32 s37, s60, {8192*a}")
        A("s_add_u32 s38, s37, 4096")
        l = newlab("gp"); d = newlab("gpd")
        A("s_mov_b32 s46, 0x8000")
        A(f"{l}:")
        for i in range(8):
            A(f"buffer_load_dwordx4 v[{G+4*i}:{G+4*i+3}], v2, s[32:35], {'s37' if i < 4 else 's38'} offen offset:{1024*(i%4)} {ldpol}")
        A("s_mov_b64 s[62:63], 0")
        for i in range(8):
            A(f"s_waitcnt vmcnt({7-i})")
            check_tags(G+4*i, 8, 9, "vcc")
            A("s_or_b64 s[62:63], s[62:63], vcc")
        A("s_cmp_eq_u64 s[62:63], 0")
        A(f"s_cbranch_scc1 {d}")
        A("s_sub_u32 s46, s46, 1")
        A(f"s_cbranch_scc1 {d}")
        A(f"s_sleep {gslp}")
        A(f"s_branch {l}")
        A(f"{d}:")
        for k in range(32): A(f"v_and_b32 v{G+k}, s57, v{G+k}")
        for st in (16, 8, 4):
            for k in range(st): A(f"v_add_f32 v{G+k}, v{G+k}, v{G+st+k}")
        for k in range(4): A(f"v_mov_b32 v{G+4+k}, v{G+k}")
        A("s_nop 1")
        for k in range(4): A(f"v_permlane32_swap_b32 v{G+k}, v{G+4+k}")
        for k in range(4): A(f"v_add_f32 v{G+k}, v{G+k}, v{G+4+k}")
        A(f"v_max_f32 v{G+4}, v{G}, v{G+1}")
        A(f"v_max3_f32 v{G+4}, v{G+4}, v{G+2}, v{G+3}")
        for rot in (8, 4, 2, 1):
            A("s_nop 1")
            A(f"v_max_f32_dpp v{G+4}, v{G+4}, v{G+4} row_ror:{rot} row_mask:0xf bank_mask:0xf")
        A("s_mov_b32 s36, 0x3e0293ee")
        for k in range(4):
            A(f"v_sub_f32 v{G+k}, v{G+k}, v{G+4}")
            A(f"v_mul_f32 v{G+k}, s36, v{G+k}")
            A(f"v_exp_f32 v{G+k}, v{G+k}")
        A("s_nop 0")
        A(f"v_add_f32 v{G+4}, v{G}, v{G+1}")
        A(f"v_add_f32 v{G+5}, v{G+2}, v{G+3}")
        A(f"v_add_f32 v{G+4}, v{G+4}, v{G+5}")
        for rot in (8, 4, 2, 1):
            A("s_nop 1")
            A(f"v_add_f32_dpp v{G+4}, v{G+4}, v{G+4} row_ror:{rot} row_mask:0xf bank_mask:0xf")
        A(f"v_rcp_f32 v{G+4}, v{G+4}")
        A("v_lshrrev_b32 v8, 5, v0")
        A("v_sub_u32 v9, 0, v8")
        A("v_and_b32 v9, 0xffff0000, v9")
        A("v_mov_b32 v14, 0x03020302")
        for k in range(4):
            A(f"v_mul_f32 v{G+k}, v{G+k}, v{G+4}")
            A(f"v_and_b32 v{G+5}, v{G+k}, v9")
            A(f"v_sub_f32 v{G+k}, v{G+k}, v{G+5}")
            A(f"v_perm_b32 v{G+k}, v{G+k}, v{G+k}, v14")
        A("v_lshlrev_b32 v8, 8, v8")
        A("v_lshl_add_u32 v8, v5, 4, v8")
        A("v_and_b32 v9, 1, v4")
        A("v_lshl_add_u32 v8, v9, 9, v8")
        A(f"v_add_u32 v8, {PD0 + 1024*a}, v8")
        A(f"ds_write_b128 v8, v[{G}:{G+3}]")
        lds_inc(cP + 4*a, "v6", "v7")
        A(f"{sk}:")
        lds_wait(cP + 4*a, 1, "v6", "v8", "s43", "s46", sleep=4)
        for hb in range(2):
            for i in range(4):
                A(f"ds_read_b128 v[{PV+16*hb+4*i}:{PV+16*hb+4*i+3}], v{PA} offset:{1024*a + 512*hb + 16*i}")
        for k in range(16): A(f"v_mov_b32 v{AC+k}, 0")
        A("s_waitcnt vmcnt(0) lgkmcnt(0)")
        for t in range(16):
            b = BB + 8*(t % 2)
            for hb in range(2):
                for m in range(4): A(f"v_and_b32 v{b+4*hb+m}, v{PV+16*hb+t}, v{M+m}")
            A("s_nop 0")
            for hb in range(2):
                for tau in range(2):
                    r = F0 + 64*tau + 4*t
                    ac = AC + 8*hb + 4*tau
                    if hb == 1 and tau == 0 and False: A("s_nop 0")
                    A(f"v_mfma_f32_16x16x32_bf16 v[{ac}:{ac+3}], v[{r}:{r+3}], v[{b+4*hb}:{b+4*hb+3}], v[{ac}:{ac+3}]")
        A("s_nop 7\ns_nop 1")
        for k in range(16):
            A(f"v_add_f32_dpp v{RA+k}, v{AC+k}, v{AC+k} row_ror:8 row_mask:0xf bank_mask:0xf")
        for k in range(16):
            hb, tau, rr = k // 8, (k // 4) % 2, k % 4
            A(f"ds_write_b32 v{WW}, v{RA+k} offset:{(2*a+hb)*SWS + tau*512 + rr*32}")
        A("s_mov_b64 exec, 1")
        A(f"ds_add_u32 v6, v7 offset:{cW + 8*a}")
        A(f"ds_add_u32 v6, v7 offset:{cW + 8*a + 4}")
        A("s_mov_b64 exec, -1")

    epass(0)
    if stamps > 5: stamp(5)
    lds_wait(cS + 8, 4, "v6", "v8", "s43", "s46", sleep=slp)
    pw(0)
    if stamps > 6: stamp(6)
    epass(1)
    lds_wait(cS + 16, 4, "v6", "v8", "s43", "s46", sleep=slp)
    pw(1)
    if stamps > 7: stamp(7)
    A("s_cmp_eq_u32 s22, 3")
    A("s_cbranch_scc1 L_final")
    A("s_cmp_lg_u32 s22, 2")
    A("s_cbranch_scc1 L_done")
    A("v_lshrrev_b32 v8, 5, v0")
    A("v_and_b32 v9, 31, v0")
    A("v_lshlrev_b32 v9, 4, v9")
    A("v_lshl_add_u32 v9, v8, 11, v9")
    A(f"v_add_u32 v15, {OB0}, v9")
    A("s_lshl_b32 s38, s20, 11")
    A("s_add_u32 s37, s61, s38")
    for a in range(2):
        lds_wait(cS + 16 + 8*a, 4, "v6", "v8", "s43", "s46", sleep=slp)
        lds_wait(cS + 16 + 8*a + 4, 4, "v6", "v8", "s43", "s46", sleep=(oslp if a else slp))
        r = G + 16*a
        for w in range(4): A(f"ds_read_b128 v[{r+4*w}:{r+4*w+3}], v15 offset:{4096*a + 512*w}")
        if a == 1:
            A(f"buffer_store_dwordx4 v[{G}:{G+3}], v2, s[32:35], s37 offen {stpol}")
        A("s_waitcnt lgkmcnt(0)")
        for k in range(4):
            A(f"v_add_f32 v{r+k}, v{r+k}, v{r+4+k}")
            A(f"v_add_f32 v{r+8+k}, v{r+8+k}, v{r+12+k}")
        for k in range(4): A(f"v_add_f32 v{r+k}, v{r+k}, v{r+8+k}")
        put_tags(r)
    A(f"buffer_store_dwordx4 v[{G+16}:{G+19}], v2, s[32:35], s37 offen offset:1024 {stpol}")
    A("s_endpgm")
    A("L_final:")
    A("v_lshrrev_b32 v8, 3, v0")
    A("v_and_b32 v9, 7, v0")
    A("v_lshlrev_b32 v15, 3, v9")
    A("v_lshlrev_b32 v9, 4, v9")
    A("v_lshl_add_u32 v3, v8, 11, v9")
    A("s_lshl_b32 s38, s20, 7")
    A("s_add_u32 s37, s61, s38")
    A("s_add_u32 s38, s37, 16384")
    lds_wait(cS + 28, 4, "v6", "v8", "s43", "s46", sleep=oslp)
    A("s_mov_b64 s[62:63], -1")
    A("s_mov_b64 s[64:65], -1")
    A("s_mov_b32 s46, 0x8000")
    A("L_fpoll:")
    A("s_mov_b64 exec, s[62:63]")
    A("s_cbranch_execz L_fp1")
    A(f"buffer_load_dwordx4 v[{G}:{G+3}], v3, s[32:35], s37 offen {ldpol}")
    A("L_fp1:")
    A("s_mov_b64 exec, s[64:65]")
    A("s_cbranch_execz L_fp2")
    A(f"buffer_load_dwordx4 v[{G+4}:{G+7}], v3, s[32:35], s38 offen {ldpol}")
    A("L_fp2:")
    A("s_mov_b64 exec, -1")
    A("s_waitcnt vmcnt(0)")
    check_tags(G, 8, 9, "s[62:63]")
    check_tags(G+4, 8, 9, "s[64:65]")
    A("s_nop 0")
    A("s_or_b64 s[66:67], s[62:63], s[64:65]")
    A("s_cbranch_scc0 L_fdone")
    A("s_sub_u32 s46, s46, 1")
    A("s_cbranch_scc1 L_fdone")
    if fslp: A(f"s_sleep {fslp}")
    A("s_branch L_fpoll")
    A("L_fdone:")
    for k in range(8): A(f"v_and_b32 v{G+k}, s57, v{G+k}")
    for k in range(4): A(f"v_add_f32 v{G+k}, v{G+k}, v{G+4+k}")
    A("s_nop 1")
    for k in range(4): A(f"v_add_f32_dpp v{G+k}, v{G+k}, v{G+k} row_ror:8 row_mask:0xf bank_mask:0xf")
    for sw in ("16", "32"):
        for k in range(4): A(f"v_mov_b32 v{G+4+k}, v{G+k}")
        A("s_nop 1")
        for k in range(4): A(f"v_permlane{sw}_swap_b32 v{G+k}, v{G+4+k}")
        for k in range(4): A(f"v_add_f32 v{G+k}, v{G+k}, v{G+4+k}")
    A(f"v_cvt_pk_bf16_f32 v{G}, v{G}, v{G+1}")
    A(f"v_cvt_pk_bf16_f32 v{G+1}, v{G+2}, v{G+3}")
    A("s_lshl_b32 s36, s21, 10")
    A("s_lshl_b32 s38, s20, 6")
    A("s_add_u32 s36, s36, s38")
    A("s_mov_b64 exec, 0xff")
    A(f"buffer_store_dwordx2 v[{G}:{G+1}], v15, s[52:55], s36 offen")
    A("s_cmp_lg_u32 s20, 0")
    A("s_cbranch_scc1 L_fend")
    A("v_mov_b32 v8, s56")
    A("s_mov_b64 exec, 1")
    A("buffer_store_dword v8, off, s[32:35], s47")
    A("L_fend:")
    if stamps > 3:
        A("s_mov_b64 exec, -1")
        A("s_waitcnt vmcnt(0)")
        stamp(3)
        stamp_store(range(3, stamps))
    A("L_done:")
    A("s_endpgm")
    A(f""".section .rodata,"a"
.p2align 6
.amdhsa_kernel {KN}
  .amdhsa_next_free_vgpr 256
  .amdhsa_next_free_sgpr 96
  .amdhsa_accum_offset 256
  .amdhsa_group_segment_fixed_size 0
  .amdhsa_kernarg_size 64
  .amdhsa_user_sgpr_count 2
  .amdhsa_user_sgpr_kernarg_segment_ptr 1
  .amdhsa_system_sgpr_workgroup_id_x 1
  .amdhsa_float_denorm_mode_32 3
.end_amdhsa_kernel""")
    return "\n".join(L) + "\n"

if __name__ == "__main__":
    for spec in sys.argv[1:]:
        path, _, opts = spec.partition(":")
        kw = {}
        for p in filter(None, opts.split(",")):
            k, v = p.split("=")
            kw[k] = int(v) if v.lstrip("-").isdigit() else v
        open(path, "w").write(gen(**kw))
        print(path)
```

```python
import sys
KN = "standalone__low_rank_proj_linformer__decode_kernel"

HEADER = """; Kernarg layout for this problem (64 bytes, ptrs only, base s[0:1]):
"""

def gen(D=5, DV=None, stamps=0, epol="nt", fpol="nt", hthr=2, prio=1, slp=8, oslp=1, gslp=8, fslp=2,
        stpol="sc1", ldpol="sc1", kvpol="nt", qpol="", nosst=0, nosg=0, noo=0, noef=0, tlb=0, tlbat=2, fthr=None, tAR=22, tAO=25, tBR=36, tBO=40, npoll=4, NP=2, NL=2, dslp=1, trig=4, nowst=0, nowld=0, fastx=3, fdelta=8):
    fthr = fthr or hthr
    DV = DV or D
    L = []
    A = L.append
    ESTR = 2064
    SW0 = 64 * ESTR
    SWS = 4224
    PSTR = 2112
    OB0 = SW0 + 4 * SWS
    SC0 = OB0 + 8192
    PD0 = SC0 + 1024
    CN0 = PD0 + 2048
    DS0 = CN0 + 128
    NDESC = NL + 16*NP + 1
    LDS = DS0 + 640
    assert NDESC * 8 <= 640 and 1 <= NL and NP + NL <= 6
    cS, cE, cP, cW, cT, cQ = 0, 32, 48, 64, 80, 84
    WS_EP = 0
    WS_SC = 1 << 16
    WS_P = 1 << 19
    WS_C = 1 << 15
    WS_W = 2 << 20
    WS_O = 1 << 20
    lab = [0]
    def newlab(p):
        lab[0] += 1
        return f"L_{p}{lab[0]}"
    def lds_wait(off, target, vaddr, vt, st, sc, sleep=2):
        l = newlab("w"); d = newlab("wd")
        A(f"s_mov_b32 {sc}, 0x40000")
        A(f"{l}:")
        A(f"ds_read_b32 {vt}, {vaddr} offset:{off}")
        A("s_waitcnt lgkmcnt(0)")
        A(f"v_readfirstlane_b32 {st}, {vt}")
        A("s_nop 0")
        A(f"s_cmp_ge_u32 {st}, {target}")
        A(f"s_cbranch_scc1 {d}")
        A(f"s_sub_u32 {sc}, {sc}, 1")
        A(f"s_cbranch_scc1 {d}")
        A(f"s_sleep {sleep}")
        A(f"s_branch {l}")
        A(f"{d}:")
    def lds_inc(off, vaddr, vone):
        A("s_mov_b64 exec, 1")
        A(f"ds_add_u32 {vaddr}, {vone} offset:{off}")
        A("s_mov_b64 exec, -1")
    def stamp(i):
        if stamps and i < stamps:
            A(f"s_memrealtime s[{70+2*i}:{71+2*i}]")
    def stamp_store(idx):
        A("s_waitcnt lgkmcnt(0)")
        A("s_add_u32 s90, s18, 0x20000000\ns_addc_u32 s91, s19, 0")
        A("s_lshl_b32 s37, s2, 7\nv_mov_b32 v9, s37")
        for i in idx:
            A(f"v_mov_b32 v10, s{70+2*i}\nv_mov_b32 v11, s{71+2*i}")
            A("s_mov_b64 exec, 1")
            A(f"global_store_dwordx2 v9, v[10:11], s[90:91] offset:{8*i}")
            A("s_mov_b64 exec, -1")
            A("s_nop 1")

    A(HEADER + f"; @launch grid=(256,1,1) block=(512,1,1) lds={LDS}")
    A('.amdgcn_target "amdgcn-amd-amdhsa--gfx950"')
    A(".text")
    A(f".globl {KN}\n.p2align 8\n.type {KN},@function\n{KN}:")
    A("s_cmp_ge_u32 s2, 256")
    A("s_cbranch_scc1 L_done")
    A("s_load_dwordx16 s[4:19], s[0:1], 0")
    stamp(0)
    A("v_lshrrev_b32 v1, 6, v0")
    A("v_and_b32 v0, 63, v0")
    A("v_readfirstlane_b32 s3, v1")
    A("s_and_b32 s20, s2, 15")
    A("s_lshr_b32 s21, s2, 4")
    A("v_lshrrev_b32 v4, 4, v0")
    A("v_and_b32 v5, 15, v0")
    A(f"v_mov_b32 v6, {CN0}")
    A("v_mov_b32 v7, 1")
    A("v_lshlrev_b32 v2, 4, v0")
    A("s_cmp_ge_u32 s3, 4")
    A("s_cbranch_scc1 L_helper")

    RING = 16; Q = 48; P = 64; X0, X1, Y, T = 72, 73, 74, 75
    M2 = 76; SA = 77; WA = 78; W = 79; ACC = 80; TM = 88; OA = 96; CA = 97; LP = 98; DA = 99; DV0 = 100
    A("v_add_u32 v3, 4096, v2")
    A("v_lshlrev_b32 v8, 4, v5")
    A("s_lshl_b32 s36, s21, 24")
    A("s_lshl_b32 s37, s20, 18")
    A("s_add_u32 s36, s36, s37")
    A("s_lshl_b32 s37, s3, 13")
    A("s_add_u32 s36, s36, s37")
    A("s_lshl_b32 s39, s21, 10")
    A("s_waitcnt lgkmcnt(0)")
    A("s_mov_b32 s24, s6\ns_mov_b32 s25, s7\ns_mov_b32 s26, 0x10000000\ns_mov_b32 s27, 0x20000")
    A("s_mov_b32 s32, s4\ns_mov_b32 s33, s5\ns_mov_b32 s34, 16384\ns_mov_b32 s35, 0x20000")
    def kvload(idx, srd, soff):
        s = idx % 8
        A(f"buffer_load_dwordx4 v[{RING+4*s}:{RING+4*s+3}], v{2 + s//4}, s[{srd}:{srd+3}], {soff} offen offset:{(s%4)*1024} {kvpol}")
    for h in range(4):
        A(f"buffer_load_dwordx4 v[{Q+4*h}:{Q+4*h+3}], v8, s[32:35], s39 offen offset:{256*h} {qpol}")
    for u in range(D): kvload(u, 24, "s36")
    A("s_mov_b32 s28, s8\ns_mov_b32 s29, s9\ns_mov_b32 s30, 0x10000000\ns_mov_b32 s31, 0x20000")
    if prio: A(f"s_setprio {prio}")
    A("v_and_b32 v9, 1, v0")
    A("v_sub_u32 v10, 0, v9")
    A(f"v_and_b32 v{M2}, 0xffff0000, v10")
    A(f"v_mul_u32_u24 v{SA}, {PSTR}, v9")
    A("v_bfe_u32 v10, v0, 2, 2")
    A("v_lshlrev_b32 v10, 2, v10")
    A("v_add_u32 v10, v10, v4")
    A("s_lshl_b32 s37, s3, 5")
    A("v_add_u32 v10, s37, v10")
    A(f"v_lshl_add_u32 v{SA}, v10, 1, v{SA}")
    A(f"v_add_u32 v{SA}, {SW0}, v{SA}")
    A("v_and_b32 v10, 7, v0")
    A("v_lshlrev_b32 v10, 2, v10")
    A("v_add_u32 v10, v10, v4")
    A(f"v_lshlrev_b32 v{LP}, 2, v10")
    A("v_add_u32 v10, s37, v10")
    A(f"v_lshlrev_b32 v{WA}, 2, v10")
    A(f"v_add_u32 v{WA}, {SW0}, v{WA}")
    A("v_lshlrev_b32 v10, 5, v5")
    A("v_lshl_add_u32 v10, v4, 3, v10")
    A("s_lshl_b32 s37, s3, 9")
    A("v_add_u32 v10, s37, v10")
    A(f"v_add_u32 v{OA}, {OB0}, v10")
    for k in range(8): A(f"v_mov_b32 v{ACC+k}, 0")
    A(f"v_mov_b32 v{CA}, v6")
    A("s_cmp_eq_u32 s3, 0")
    A("s_cselect_b32 s48, 1, 0")
    A("s_mov_b32 s49, 0")
    A("s_mov_b32 s40, 0xffff0000")
    A("s_barrier")
    A("s_mov_b32 s38, 0")
    A("s_mov_b32 s41, s36")

    def next_off():
        A("s_add_u32 s43, s38, 1")
        A("s_lshr_b32 s44, s43, 3")
        A("s_and_b32 s43, s43, 7")
        A("s_lshl_b32 s44, s44, 22")
        A("s_lshl_b32 s43, s43, 15")
        A("s_add_u32 s42, s36, s44")
        A("s_add_u32 s42, s42, s43")
    def tick():
        l = newlab("nt")
        A("s_cmp_eq_u32 s48, 0")
        A(f"s_cbranch_scc1 {l}")
        lds_inc(cT, "v6", "v7")
        A(f"{l}:")
    def stage_done():
        lds_inc(cS, f"v{CA}", "v7")
        A(f"v_add_u32 v{CA}, 4, v{CA}")

    def kstep(cur_srd, nxt_srd, nxt_off, Din, Dout):
        issued = Din
        for u in range(8):
            A(f"s_waitcnt vmcnt({issued - u - 1})")
            want = u + 1 + (Din if u < 7 else Dout) if Din == Dout else u + 1 + Din + (Dout - Din) * (u + 1) // 8
            while issued < want:
                if issued < 8: kvload(issued, cur_srd, "s41")
                else: kvload(issued, nxt_srd, nxt_off)
                issued += 1
            r = RING + 4*u
            A(f"v_dot2_f32_bf16 v{P+u}, v{r}, v{Q}, 0")
            for m in range(1, 4):
                A(f"v_dot2_f32_bf16 v{P+u}, v{r+m}, v{Q+m}, v{P+u}")
            if u % 4 == 3:
                e = u // 4; p = P + 4*e
                A(f"v_add_f32_dpp v{X0}, v{p}, v{p} row_ror:8 row_mask:0xf bank_mask:0x3")
                A(f"v_add_f32_dpp v{X1}, v{p+1}, v{p+1} row_ror:8 row_mask:0xf bank_mask:0x3")
                A("s_nop 0")
                A(f"v_add_f32_dpp v{X0}, v{p+2}, v{p+2} row_ror:8 row_mask:0xf bank_mask:0xc")
                A(f"v_add_f32_dpp v{X1}, v{p+3}, v{p+3} row_ror:8 row_mask:0xf bank_mask:0xc")
                A(f"s_nop 0")
                A(f"v_add_f32_dpp v{Y}, v{X0}, v{X0} row_half_mirror row_mask:0xf bank_mask:0x5")
                A("s_nop 1")
                A(f"v_add_f32_dpp v{Y}, v{X1}, v{X1} row_half_mirror row_mask:0xf bank_mask:0xa")
                A("s_nop 1")
                A(f"v_add_f32_dpp v{Y}, v{Y}, v{Y} quad_perm:[1,0,3,2] row_mask:0xf bank_mask:0xf")
                A("s_nop 1")
                A(f"v_add_f32_dpp v{Y}, v{Y}, v{Y} quad_perm:[2,3,0,1] row_mask:0xf bank_mask:0xf")
                A(f"v_and_b32 v{T}, v{Y}, v{M2}")
                A(f"v_sub_f32 v{T}, v{Y}, v{T}")
                A(f"ds_write_b16_d16_hi v{SA}, v{T} offset:{32*e}")
        assert issued == 8 + Dout
        A(f"v_add_u32 v{SA}, 256, v{SA}")

    A("L_kloop:")
    next_off()
    kstep(24, 24, "s42", D, D)
    tick()
    A("s_mov_b32 s41, s42")
    A("s_add_u32 s38, s38, 1")
    A("s_and_b32 s43, s38, 7")
    A("s_cbranch_scc1 L_knohead")
    stage_done()
    A(f"v_add_u32 v{SA}, {SWS - 2048}, v{SA}")
    for k in range(12): A(f"v_mov_b32 v{Q+k}, v{Q+4+k}")
    A("L_knohead:")
    A("s_cmp_lt_u32 s38, 31")
    A("s_cbranch_scc1 L_kloop")
    kstep(24, 28, "s36", D, DV)
    tick()
    stage_done()
    stamp(1)
    def vproc(u):
        r = RING + 4*u
        for m in range(4):
            A(f"v_lshlrev_b32 v{TM+2*m}, 16, v{r+m}")
            A(f"v_and_b32 v{TM+2*m+1}, s40, v{r+m}")
        for k in range(8):
            A(f"v_fmac_f32_dpp v{ACC+k}, v{W}, v{TM+k} row_newbcast:{u} row_mask:0xf bank_mask:0xf")
    def vpart(u0, u1, drain=False, pull=False):
        for u in range(u0, u1):
            if drain:
                A(f"s_waitcnt vmcnt({7-u})")
            else:
                A(f"s_waitcnt vmcnt({DV-1})")
                if u + DV < 8: kvload(u + DV, 28, "s41")
                else: kvload(u + DV, 28, "s42")
            if u == 0: A("s_waitcnt lgkmcnt(0)")
            if pull and u == u1 - 1:
                A("s_mov_b64 exec, 1")
                A(f"ds_add_rtn_u32 v{DV0}, v6, v7 offset:{cQ}")
                A("s_mov_b64 exec, -1")
            vproc(u)
    def vstep():
        A(f"ds_read_b32 v{W}, v{WA}")
        vpart(0, 8)
        A(f"v_add_u32 v{WA}, 512, v{WA}")
    def vhead_end():
        A("s_nop 1")
        for k in range(4): A(f"v_permlane32_swap_b32 v{ACC+k}, v{ACC+k+4}")
        for k in range(4): A(f"v_add_f32 v{ACC+k}, v{ACC+k}, v{ACC+k+4}")
        A("s_nop 0")
        for k in range(2): A(f"v_permlane16_swap_b32 v{ACC+k}, v{ACC+k+2}")
        for k in range(2): A(f"v_add_f32 v{TM+k}, v{ACC+k}, v{ACC+k+2}")
        A(f"ds_write_b64 v{OA}, v[{TM}:{TM+1}]")
        stage_done()
    A("s_mov_b32 s38, 0")
    A("s_mov_b32 s41, s36")
    A("L_vhead:")
    lds_wait(cW - 16, 4, f"v{CA}", f"v{T}", "s43", "s46")
    A("L_vloop:")
    next_off()
    vstep()
    tick()
    A("s_mov_b32 s41, s42")
    A("s_add_u32 s38, s38, 1")
    A(f"s_cmp_eq_u32 s38, {31 - NP - NL}")
    A("s_cbranch_scc1 L_dyn")
    A("s_and_b32 s43, s38, 7")
    A("s_cbranch_scc1 L_vloop")
    vhead_end()
    for k in range(8): A(f"v_mov_b32 v{ACC+k}, 0")
    A(f"v_add_u32 v{WA}, {SWS - 4096}, v{WA}")
    A(f"v_add_u32 v{OA}, 2048, v{OA}")
    A("s_branch L_vhead")
    A("L_dyn:")
    A(f"ds_read_b32 v{W}, v{WA}")
    vpart(0, 8 - DV, pull=True)
    A("s_waitcnt lgkmcnt(0)")
    A(f"v_readfirstlane_b32 s43, v{DV0}")
    A("s_mov_b32 s46, 0x40000")
    A("s_and_b32 s45, s43, 3")
    A("s_lshr_b32 s43, s43, 2")
    A("s_lshl_b32 s43, s43, 3")
    A(f"s_add_u32 s43, s43, {DS0}")
    A(f"v_mov_b32 v{DA}, s43")
    A("L_dq:")
    A(f"ds_read_b32 v{DV0}, v{DA}")
    A("s_waitcnt lgkmcnt(0)")
    A(f"v_readfirstlane_b32 s43, v{DV0}")
    A("s_nop 0")
    A("s_cmp_lg_u32 s43, 0")
    A("s_cbranch_scc1 L_dq_ok")
    A("s_sub_u32 s46, s46, 1")
    A("s_cbranch_scc1 L_drain")
    A("s_sleep 1")
    A("s_branch L_dq")
    A("L_dq_ok:")
    A("s_cmp_eq_u32 s43, -1")
    A("s_cbranch_scc1 L_drain")
    A("s_lshl_b32 s44, s45, 13")
    A("s_add_u32 s42, s43, s44")
    A("s_sub_u32 s42, s42, 1")
    vpart(8 - DV, 8)
    lds_wait(4, 1, f"v{DA}", f"v{DV0}", "s43", "s46", sleep=1)
    A("s_lshl_b32 s45, s45, 7")
    A("s_add_u32 s43, s43, s45")
    A(f"v_add_u32 v{WA}, s43, v{LP}")
    A("s_mov_b32 s41, s42")
    A("s_branch L_dyn")
    A("L_drain:")
    vpart(8 - DV, 8, drain=True)
    vhead_end()
    if stamps:
        stamp(2)
        if stamps >= 12:
            A("s_waitcnt lgkmcnt(0)")
            A("s_add_u32 s90, s18, 0x20000000\ns_addc_u32 s91, s19, 0")
            A("s_lshl_b32 s37, s2, 7\ns_lshl_b32 s38, s3, 3\ns_add_u32 s37, s37, s38\nv_mov_b32 v9, s37")
            A("v_mov_b32 v10, s74\nv_mov_b32 v11, s75\ns_mov_b64 exec, 1")
            A("global_store_dwordx2 v9, v[10:11], s[90:91] offset:64\ns_mov_b64 exec, -1\ns_nop 1")
        A("s_cmp_lg_u32 s3, 0\ns_cbranch_scc1 L_done")
        stamp_store(range(min(stamps, 3)))
    A("s_endpgm")

    F0 = 128
    EA, SB, PA, WW, M = 10, 11, 12, 13, 16
    TG = 20
    AC = 24
    BB = 40
    RA = 56
    PV = 88
    G = 56
    A("L_helper:")
    A("s_sub_u32 s22, s3, 4")
    A("v_mov_b32 v8, 0")
    A("v_lshl_add_u32 v9, v0, 2, v6")
    for i in range(3): A(f"ds_write_b32 v9, v8 offset:{256*i}")
    A("s_waitcnt lgkmcnt(0)")
    A("s_barrier")
    A("s_mov_b32 s32, s18\ns_mov_b32 s33, s19\ns_mov_b32 s34, 0x40000000\ns_mov_b32 s35, 0x20000")
    A("s_lshl_b32 s47, s21, 8")
    A(f"buffer_load_dword v{TG}, off, s[32:35], s47 sc1")
    A(f"s_add_u32 s68, s47, {WS_C}")
    A("s_or_b32 s43, s20, s22")
    A("s_cbranch_scc1 L_noinit")
    A("s_mov_b64 exec, 1")
    A("buffer_store_dword v8, off, s[32:35], s68 sc1")
    A("s_mov_b64 exec, -1")
    A("L_noinit:")
    A("s_mov_b32 s24, s10\ns_mov_b32 s25, s11\ns_mov_b32 s26, 0x200000\ns_mov_b32 s27, 0x20000")
    A("s_mov_b32 s28, s12\ns_mov_b32 s29, s13\ns_mov_b32 s30, 0x200000\ns_mov_b32 s31, 0x20000")
    A("s_mov_b32 s52, s14\ns_mov_b32 s53, s15\ns_mov_b32 s54, 16384\ns_mov_b32 s55, 0x20000")
    A("s_lshl_b32 s36, s22, 19")
    A("s_lshl_b32 s37, s20, 11")
    A("s_add_u32 s36, s36, s37")
    A(f"s_mul_i32 s38, s22, {16*ESTR}")
    if tlb:
        A("s_mov_b32 s64, s6\ns_mov_b32 s65, s7\ns_mov_b32 s66, 0x10000000\ns_mov_b32 s67, 0x20000")
        A("s_mov_b32 s92, s8\ns_mov_b32 s93, s9\ns_mov_b32 s94, 0x10000000\ns_mov_b32 s95, 0x20000")
        A("s_lshl_b32 s44, s21, 24\ns_lshl_b32 s45, s20, 18\ns_add_u32 s44, s44, s45\ns_lshl_b32 s45, s22, 22\ns_add_u32 s44, s44, s45")
    for rr in range(16):
        if tlb and rr == tlbat:
            A("s_mov_b64 exec, 1")
            A("buffer_load_dword v120, off, s[64:67], s44 nt")
            A("buffer_load_dword v121, off, s[92:95], s44 nt")
            A("s_mov_b64 exec, -1")
        A(f"s_add_u32 m0, s38, {rr*ESTR}")
        for hf in range(2):
            A(f"s_waitcnt vmcnt({hthr-1})")
            if not noef: A(f"buffer_load_dwordx4 v2, s[24:27], s36 offen offset:{1024*hf} {epol} lds")
        A("s_add_u32 s36, s36, 32768")
    A("v_lshlrev_b32 v3, 19, v4")
    A("v_lshl_add_u32 v3, v5, 4, v3")
    A("s_lshl_b32 s36, s22, 9")
    A("s_add_u32 s36, s36, s37")
    for t in range(16):
        for tau in range(2):
            A(f"s_waitcnt vmcnt({fthr-1})")
            r = F0 + 64*tau + 4*t
            if not noef: A(f"buffer_load_dwordx4 v[{r}:{r+3}], v3, s[28:31], s36 offen offset:{256*tau} {fpol}")
        A("s_add_u32 s36, s36, 32768")
    if noef: A("s_waitcnt vmcnt(0)")
    A(f"v_readfirstlane_b32 s56, v{TG}\ns_nop 0")
    A("s_add_u32 s56, s56, 0x01010101")
    for k in range(4):
        A(f"s_bfe_u32 s43, s56, {(8 << 16) | (8*k)}")
        A(f"v_mov_b32 v{TG+k}, s43")
    A("s_mov_b32 s57, 0xffffff00")
    A("s_mov_b32 s58, 0x0c0c0400")
    A("s_mov_b32 s59, 0x04000c0c")
    A(f"s_mul_i32 s36, s22, {16*ESTR}")
    A(f"v_mul_u32_u24 v{EA}, {ESTR}, v5")
    A(f"v_lshl_add_u32 v{EA}, v4, 4, v{EA}")
    A(f"v_add_u32 v{EA}, s36, v{EA}")
    A("v_and_b32 v8, 1, v0")
    A(f"v_mul_u32_u24 v{SB}, {PSTR}, v8")
    A("v_bfe_u32 v8, v0, 1, 1")
    A(f"v_mul_u32_u24 v8, {SWS}, v8")
    A(f"v_add_u32 v{SB}, v{SB}, v8")
    A(f"v_lshl_add_u32 v{SB}, v4, 4, v{SB}")
    A(f"v_add_u32 v{SB}, {SW0}, v{SB}")
    A("v_bfe_u32 v8, v0, 3, 1")
    A(f"v_lshlrev_b32 v{PA}, 8, v8")
    A(f"v_lshl_add_u32 v{PA}, v4, 6, v{PA}")
    A(f"v_add_u32 v{PA}, {PD0}, v{PA}")
    A("v_and_b32 v8, 7, v0")
    A(f"v_lshlrev_b32 v{WW}, 2, v8")
    A(f"v_lshl_add_u32 v{WW}, v4, 7, v{WW}")
    A("s_lshl_b32 s36, s22, 10")
    A(f"v_add_u32 v{WW}, s36, v{WW}")
    A(f"v_add_u32 v{WW}, {SW0}, v{WW}")
    A("v_and_b32 v9, 1, v0")
    A("v_lshlrev_b32 v9, 4, v9")
    A("v_mov_b32 v14, 0xffff")
    A("v_lshlrev_b32 v9, v9, v14")
    A("v_bfe_u32 v8, v0, 1, 2")
    for m in range(4):
        A(f"v_cmp_eq_u32 vcc, {m}, v8")
        A("s_nop 1")
        A(f"v_cndmask_b32 v{M+m}, 0, v9, vcc")
    A("s_lshl_b32 s60, s21, 14")
    A(f"s_add_u32 s60, s60, {WS_SC}")
    A("s_lshl_b32 s61, s21, 15")
    A(f"s_add_u32 s61, s61, {WS_O}")
    if stamps > 4: stamp(4)

    def put_tags(r):
        for k in range(4): A(f"v_and_or_b32 v{r+k}, v{r+k}, s57, v{TG+k}")
    def check_tags(r, t0, t1, dst):
        A(f"v_perm_b32 v{t0}, v{r+1}, v{r}, s58")
        A(f"v_perm_b32 v{t1}, v{r+3}, v{r+2}, s59")
        A(f"v_or_b32 v{t0}, v{t0}, v{t1}")
        A(f"v_cmp_ne_u32 {dst}, s56, v{t0}")

    def epass(a):
        lds_wait(cS + 8*a, 4, "v6", "v8", "s43", "s46", sleep=slp)
        lds_wait(cS + 8*a + 4, 4, "v6", "v8", "s43", "s46", sleep=slp)
        for k in range(4): A(f"v_mov_b32 v{AC+k}, 0")
        for ch in range(8):
            for kk in range(4):
                A(f"ds_read_b128 v[{RA+8*kk}:{RA+8*kk+3}], v{EA} offset:{(4*ch+kk)*64}")
                A(f"ds_read_b128 v[{RA+8*kk+4}:{RA+8*kk+7}], v{SB} offset:{2*a*SWS + (4*ch+kk)*64}")
            for kk in range(4):
                A(f"s_waitcnt lgkmcnt({6-2*kk})")
                A(f"v_mfma_f32_16x16x32_bf16 v[{AC}:{AC+3}], v[{RA+8*kk}:{RA+8*kk+3}], v[{RA+8*kk+4}:{RA+8*kk+7}], v[{AC}:{AC+3}]")
        A("s_lshl_b32 s36, s22, 6")
        A("v_bfe_u32 v9, v0, 1, 1")
        A("v_lshlrev_b32 v8, 4, v4")
        A("v_lshl_add_u32 v8, v9, 8, v8")
        A("v_add_u32 v8, s36, v8")
        A(f"v_add_u32 v8, {SC0 + 512*a}, v8")
        A("s_nop 4")
        for k in range(4):
            A(f"v_add_f32_dpp v{AC+4+k}, v{AC+k}, v{AC+k} quad_perm:[1,0,3,2] row_mask:0xf bank_mask:0xf")
        A(f"ds_write_b128 v8, v[{AC+4}:{AC+7}]")
        A("s_mov_b64 exec, 1")
        A(f"ds_add_rtn_u32 v8, v6, v7 offset:{cE + 4*a}")
        A("s_mov_b64 exec, -1")
        A("s_waitcnt lgkmcnt(0)")
        A("v_readfirstlane_b32 s43, v8")
        sk = newlab("nopub")
        A("s_nop 0")
        A(f"s_cmp_lg_u32 s43, 3")
        A(f"s_cbranch_scc1 {sk}")
        A(f"v_add_u32 v9, {SC0 + 512*a}, v2")
        A("s_mov_b32 exec_hi, 0")
        A(f"ds_read_b128 v[{G}:{G+3}], v9")
        A("s_lshl_b32 s38, s20, 9")
        A("s_add_u32 s37, s60, s38")
        A(f"s_add_u32 s37, s37, {8192*a}")
        A("s_waitcnt lgkmcnt(0)")
        put_tags(G)
        if not nosst: A(f"buffer_store_dwordx4 v[{G}:{G+3}], v2, s[32:35], s37 offen {stpol}")
        A("s_mov_b64 exec, -1")
        A("s_nop 1")
        A(f"{sk}:")

    def pw(a):
        sk = newlab("nop"); oth = newlab("oth"); com = newlab("com")
        A(f"s_cmp_lg_u32 s22, 0")
        A(f"s_cbranch_scc1 {sk}")
        A("s_lshl_b32 s39, s21, 10")
        A(f"s_add_u32 s39, s39, {WS_P + 512*a}")
        A(f"s_add_u32 s43, s21, {8*a}")
        A("s_and_b32 s43, s43, 15")
        A("s_cmp_lg_u32 s43, s20")
        A(f"s_cbranch_scc1 {oth}")
        lds_wait(cT, (tAR, tBR)[a], "v6", "v8", "s43", "s46", sleep=slp)
        A(f"s_add_u32 s37, s60, {8192*a}")
        A("s_add_u32 s38, s37, 4096")
        l = newlab("gp"); d = newlab("gpd")
        A(f"s_mov_b32 s46, {0 if nosst else 0x8000}")
        if nosg: A(f"s_branch {d}")
        A(f"{l}:")
        for i in range(8):
            A(f"buffer_load_dwordx4 v[{G+4*i}:{G+4*i+3}], v2, s[32:35], {'s37' if i < 4 else 's38'} offen offset:{1024*(i%4)} {ldpol}")
        A("s_mov_b64 s[62:63], 0")
        for i in range(8):
            A(f"s_waitcnt vmcnt({7-i})")
            check_tags(G+4*i, 8, 9, "vcc")
            A("s_or_b64 s[62:63], s[62:63], vcc")
        A("s_cmp_eq_u64 s[62:63], 0")
        A(f"s_cbranch_scc1 {d}")
        A("s_sub_u32 s46, s46, 1")
        A(f"s_cbranch_scc1 {d}")
        A(f"s_sleep {gslp}")
        A(f"s_branch {l}")
        A(f"{d}:")
        for k in range(32): A(f"v_and_b32 v{G+k}, s57, v{G+k}")
        for st in (16, 8, 4):
            for k in range(st): A(f"v_add_f32 v{G+k}, v{G+k}, v{G+st+k}")
        for k in range(4): A(f"v_mov_b32 v{G+4+k}, v{G+k}")
        A("s_nop 1")
        for k in range(4): A(f"v_permlane32_swap_b32 v{G+k}, v{G+4+k}")
        for k in range(4): A(f"v_add_f32 v{G+k}, v{G+k}, v{G+4+k}")
        A(f"v_max_f32 v{G+4}, v{G}, v{G+1}")
        A(f"v_max3_f32 v{G+4}, v{G+4}, v{G+2}, v{G+3}")
        for rot in (8, 4, 2, 1):
            A("s_nop 1")
            A(f"v_max_f32_dpp v{G+4}, v{G+4}, v{G+4} row_ror:{rot} row_mask:0xf bank_mask:0xf")
        A("s_mov_b32 s36, 0x3e0293ee")
        for k in range(4):
            A(f"v_sub_f32 v{G+k}, v{G+k}, v{G+4}")
            A(f"v_mul_f32 v{G+k}, s36, v{G+k}")
            A(f"v_exp_f32 v{G+k}, v{G+k}")
        A("s_nop 0")
        A(f"v_add_f32 v{G+4}, v{G}, v{G+1}")
        A(f"v_add_f32 v{G+5}, v{G+2}, v{G+3}")
        A(f"v_add_f32 v{G+4}, v{G+4}, v{G+5}")
        for rot in (8, 4, 2, 1):
            A("s_nop 1")
            A(f"v_add_f32_dpp v{G+4}, v{G+4}, v{G+4} row_ror:{rot} row_mask:0xf bank_mask:0xf")
        A(f"v_rcp_f32 v{G+4}, v{G+4}")
        A("s_nop 0")
        for k in range(4): A(f"v_mul_f32 v{G+k}, v{G+k}, v{G+4}")
        put_tags(G)
        A("s_mov_b32 exec_hi, 0")
        A(f"buffer_store_dwordx4 v[{G}:{G+3}], v2, s[32:35], s39 offen {stpol}")
        A("s_mov_b64 exec, -1")
        A(f"s_branch {com}")
        A(f"{oth}:")
        lds_wait(cT, (tAO, tBO)[a], "v6", "v8", "s43", "s46", sleep=slp)
        A("v_and_b32 v3, 0x1ff, v2")
        l = newlab("pp")
        A(f"s_mov_b32 s46, {0 if nosst else 0x8000}")
        A(f"{l}:")
        A(f"buffer_load_dwordx4 v[{G}:{G+3}], v3, s[32:35], s39 offen {ldpol}")
        A("s_waitcnt vmcnt(0)")
        check_tags(G, 8, 9, "vcc")
        A("s_cmp_eq_u64 vcc, 0")
        A(f"s_cbranch_scc1 {com}")
        A("s_sub_u32 s46, s46, 1")
        A(f"s_cbranch_scc1 {com}")
        A(f"s_sleep {gslp}")
        A(f"s_branch {l}")
        A(f"{com}:")
        A("v_lshrrev_b32 v8, 5, v0")
        A("v_sub_u32 v9, 0, v8")
        A("v_and_b32 v9, 0xffff0000, v9")
        A("v_mov_b32 v14, 0x03020302")
        for k in range(4):
            A(f"v_and_b32 v{G+4+k}, s57, v{G+k}")
            A(f"v_and_b32 v{G+8}, v{G+4+k}, v9")
            A(f"v_sub_f32 v{G+4+k}, v{G+4+k}, v{G+8}")
            A(f"v_perm_b32 v{G+4+k}, v{G+4+k}, v{G+4+k}, v14")
        A("v_lshlrev_b32 v8, 8, v8")
        A("v_lshl_add_u32 v8, v5, 4, v8")
        A("v_and_b32 v9, 1, v4")
        A("v_lshl_add_u32 v8, v9, 9, v8")
        A(f"v_add_u32 v8, {PD0 + 1024*a}, v8")
        A(f"ds_write_b128 v8, v[{G+4}:{G+7}]")
        lds_inc(cP + 4*a, "v6", "v7")
        A(f"{sk}:")
        lds_wait(cP + 4*a, 1, "v6", "v8", "s43", "s46", sleep=slp)
        for hb in range(2):
            for i in range(4):
                A(f"ds_read_b128 v[{PV+16*hb+4*i}:{PV+16*hb+4*i+3}], v{PA} offset:{1024*a + 512*hb + 16*i}")
        for k in range(16): A(f"v_mov_b32 v{AC+k}, 0")
        A("s_waitcnt vmcnt(0) lgkmcnt(0)")
        for t in range(16):
            b = BB + 8*(t % 2)
            for hb in range(2):
                for m in range(4): A(f"v_and_b32 v{b+4*hb+m}, v{PV+16*hb+t}, v{M+m}")
            A("s_nop 0")
            for hb in range(2):
                for tau in range(2):
                    r = F0 + 64*tau + 4*t
                    ac = AC + 8*hb + 4*tau
                    if hb == 1 and tau == 0 and False: A("s_nop 0")
                    A(f"v_mfma_f32_16x16x32_bf16 v[{ac}:{ac+3}], v[{r}:{r+3}], v[{b+4*hb}:{b+4*hb+3}], v[{ac}:{ac+3}]")
        A("s_nop 7\ns_nop 1")
        for k in range(16):
            A(f"v_add_f32_dpp v{RA+k}, v{AC+k}, v{AC+k} row_ror:8 row_mask:0xf bank_mask:0xf")
        for k in range(16):
            hb, tau, rr = k // 8, (k // 4) % 2, k % 4
            A(f"ds_write_b32 v{WW}, v{RA+k} offset:{(2*a+hb)*SWS + tau*512 + rr*32}")
        if a == 1:
            sk2 = newlab("now")
            A(f"s_cmp_lt_u32 s22, {(8 - NP) // 2}")
            A(f"s_cbranch_scc1 {sk2}")
            A("v_and_b32 v8, 8, v0")
            A("v_cmp_ne_u32 vcc, 0, v8")
            A("v_lshlrev_b32 v8, 6, v8")
            A("v_and_b32 v9, 7, v0")
            A("v_lshl_add_u32 v8, v9, 4, v8")
            A("v_lshl_add_u32 v8, v4, 7, v8")
            for k in range(4): A(f"v_cndmask_b32 v{AC+k}, v{RA+8+k}, v{RA+12+k}, vcc")
            put_tags(AC)
            A("s_lshl_b32 s36, s21, 16")
            A("s_lshl_b32 s37, s20, 12")
            A("s_add_u32 s36, s36, s37")
            A("s_lshl_b32 s37, s22, 10")
            A("s_add_u32 s36, s36, s37")
            A(f"s_add_u32 s36, s36, {WS_W}")
            if NP % 2:
                A(f"s_cmp_eq_u32 s22, {(8 - NP) // 2}")
                A("s_cselect_b64 exec, vcc, -1")
            if not nowst: A(f"buffer_store_dwordx4 v[{AC}:{AC+3}], v8, s[32:35], s36 offen {stpol}")
            A("s_mov_b64 exec, -1")
            A(f"{sk2}:")
        A("s_mov_b64 exec, 1")
        A(f"ds_add_u32 v6, v7 offset:{cW + 8*a}")
        A(f"ds_add_u32 v6, v7 offset:{cW + 8*a + 4}")
        A("s_mov_b64 exec, -1")

    epass(0)
    if stamps > 5: stamp(5)
    pw(0)
    if stamps > 6: stamp(6)
    epass(1)
    pw(1)
    if stamps > 7: stamp(7)
    if noo: A("s_endpgm")
    A("s_cmp_eq_u32 s22, 3")
    A("s_cbranch_scc1 L_final")
    A("s_cmp_lt_u32 s22, 2")
    A("s_cbranch_scc1 L_disp")
    A("v_lshrrev_b32 v8, 5, v0")
    A("v_and_b32 v9, 31, v0")
    A("v_lshlrev_b32 v9, 4, v9")
    A("v_lshl_add_u32 v9, v8, 11, v9")
    A(f"v_add_u32 v15, {OB0}, v9")
    A("s_lshl_b32 s38, s20, 11")
    A("s_add_u32 s37, s61, s38")
    for a in range(2):
        lds_wait(cS + 16 + 8*a, 4, "v6", "v8", "s43", "s46", sleep=slp)
        lds_wait(cS + 16 + 8*a + 4, 4, "v6", "v8", "s43", "s46", sleep=(oslp if a else slp))
        r = G + 16*a
        for w in range(4): A(f"ds_read_b128 v[{r+4*w}:{r+4*w+3}], v15 offset:{4096*a + 512*w}")
        if a == 1:
            A(f"buffer_store_dwordx4 v[{G}:{G+3}], v2, s[32:35], s37 offen {stpol}")
        A("s_waitcnt lgkmcnt(0)")
        for k in range(4):
            A(f"v_add_f32 v{r+k}, v{r+k}, v{r+4+k}")
            A(f"v_add_f32 v{r+8+k}, v{r+8+k}, v{r+12+k}")
        for k in range(4): A(f"v_add_f32 v{r+k}, v{r+k}, v{r+8+k}")
        put_tags(r)
    A(f"buffer_store_dwordx4 v[{G+16}:{G+19}], v2, s[32:35], s37 offen offset:1024 {stpol}")
    if stamps >= 15:
        A("s_memrealtime s[70:71]\ns_waitcnt vmcnt(0)\ns_memrealtime s[72:73]\ns_waitcnt lgkmcnt(0)")
        A("s_add_u32 s90, s18, 0x20000000\ns_addc_u32 s91, s19, 0")
        A("s_lshl_b32 s37, s2, 7\nv_mov_b32 v9, s37")
        A("v_mov_b32 v12, s70\nv_mov_b32 v13, s71\nv_mov_b32 v14, s72\nv_mov_b32 v15, s73\ns_mov_b64 exec, 1")
        A("global_store_dwordx4 v9, v[12:15], s[90:91] offset:96")
    A("s_endpgm")
    A("L_disp:")
    A("s_lshl_b32 s36, s21, 24")
    A(f"s_add_u32 s36, s36, {(3 << 22) + 1}")
    A("s_lshl_b32 s37, s20, 18")
    A("s_add_u32 s37, s37, s36")
    A(f"v_mov_b32 v3, {DS0}")
    A("s_mov_b64 exec, 1")
    for k in range(NL):
        tile = 8 - NP - NL + k
        A(f"s_add_u32 s38, s37, {tile << 15}")
        A("v_mov_b32 v8, s38")
        A(f"v_mov_b32 v9, {SW0 + 3*SWS + tile*512}")
        A(f"ds_write_b64 v3, v[8:9] offset:{8*k}")
    A("s_mov_b64 exec, -1")
    A("s_lshl_b32 s38, s22, 3")
    A(f"s_add_u32 s38, s38, {8*NL - 8}")
    A("v_add_u32 v3, s38, v3")
    A("v_and_b32 v14, 0x1ff, v2")
    A("v_bfe_u32 v8, v0, 3, 2")
    A("v_and_b32 v9, 7, v0")
    A("v_lshlrev_b32 v15, 7, v8")
    A("v_lshl_add_u32 v15, v9, 2, v15")
    A("s_lshl_b32 s39, s21, 16")
    A(f"s_add_u32 s39, s39, {WS_W + (8 - NP)*512}")
    A("s_lshl_b32 s44, s22, 2")
    A(f"s_add_u32 s44, s44, {4*(NL-1) + trig}")
    A("s_lshl_b32 s45, s22, 9")
    A("s_add_u32 s45, s45, 512")
    A("L_dl:")
    lds_wait(cQ, "s44", "v6", "v8", "s43", "s46", sleep=dslp)
    lds_wait(0, 1, "v3", "v8", "s43", "s46", sleep=dslp)
    A("s_cmp_eq_u32 s43, -1")
    A("s_cbranch_scc1 L_dexit")
    A("v_mov_b32 v8, 1")
    A("s_mov_b64 exec, 1")
    A("buffer_atomic_add v8, off, s[32:35], s68 sc0")
    A("s_mov_b64 exec, -1")
    A("s_waitcnt vmcnt(0)")
    A("v_readfirstlane_b32 s43, v8")
    A("s_nop 0")
    A(f"s_cmp_ge_u32 s43, {16*NP}")
    A("s_cbranch_scc1 L_dend")
    A("s_and_b32 s37, s43, 15")
    A("s_lshr_b32 s38, s43, 4")
    A("s_lshl_b32 s42, s37, 12")
    A("s_lshl_b32 s41, s38, 9")
    A("s_add_u32 s42, s42, s41")
    A("s_add_u32 s42, s42, s39")
    if not nowld: A(f"buffer_load_dwordx4 v[{G}:{G+3}], v14, s[32:35], s42 offen {ldpol}")
    A("s_lshl_b32 s37, s37, 18")
    A(f"s_add_u32 s38, s38, {8 - NP}")
    A("s_lshl_b32 s38, s38, 15")
    A("s_add_u32 s37, s37, s38")
    A("s_add_u32 s37, s37, s36")
    A("v_mov_b32 v8, s37")
    A("ds_write_b32 v3, v8 offset:8")
    A(f"s_mov_b32 s46, {0 if nowst else 0x8000}")
    A("L_dw:")
    A("s_waitcnt vmcnt(0)")
    check_tags(G, 8, 9, "vcc")
    A("s_cmp_eq_u64 vcc, 0")
    A("s_cbranch_scc1 L_dw_ok")
    A("s_sub_u32 s46, s46, 1")
    A("s_cbranch_scc1 L_dw_ok")
    A(f"s_sleep {gslp}")
    A(f"buffer_load_dwordx4 v[{G}:{G+3}], v14, s[32:35], s42 offen {ldpol}")
    A("s_branch L_dw")
    A("L_dw_ok:")
    A("v_add_u32 v9, s45, v15")
    for k in range(4):
        A(f"v_and_b32 v{G+k}, s57, v{G+k}")
        A(f"ds_write_b32 v9, v{G+k} offset:{32*k}")
    A("v_mov_b32 v8, s45")
    A("ds_write_b32 v3, v8 offset:12")
    A("v_add_u32 v3, 16, v3")
    A("s_add_u32 s44, s44, 8")
    A("s_add_u32 s45, s45, 1024")
    A("s_branch L_dl")
    A("L_dend:")
    A("v_mov_b32 v8, -1")
    A("ds_write_b32 v3, v8 offset:8")
    A("L_dexit:")
    A("s_cmp_lg_u32 s22, 0")
    A("s_cbranch_scc1 L_done")
    A("L_final:")
    A("v_lshrrev_b32 v8, 2, v0")
    A("v_and_b32 v9, 3, v0")
    A("v_lshlrev_b32 v15, 3, v9")
    A("v_lshlrev_b32 v9, 4, v9")
    A("v_lshl_add_u32 v3, v8, 11, v9")
    A("s_and_b32 s39, s22, 1")
    A("s_lshl_b32 s38, s20, 1")
    A("s_add_u32 s39, s39, s38")
    A("s_lshl_b32 s38, s39, 6")
    A("s_add_u32 s37, s61, s38")
    lds_wait(cS + 28, 4, "v6", "v8", "s43", "s46", sleep=oslp)
    A("s_mov_b64 s[62:63], -1")
    A("s_mov_b32 s46, 0x8000")
    A("L_fpoll:")
    A("s_mov_b64 exec, s[62:63]")
    A(f"buffer_load_dwordx4 v[{G}:{G+3}], v3, s[32:35], s37 offen {ldpol}")
    A("s_mov_b64 exec, -1")
    A("s_waitcnt vmcnt(0)")
    check_tags(G, 8, 9, "s[62:63]")
    A("s_nop 0")
    A("s_bcnt1_i32_b64 s43, s[62:63]")
    A("s_cbranch_scc0 L_fdone")
    A("s_sub_u32 s46, s46, 1")
    A("s_cbranch_scc1 L_fdone")
    A(f"s_cmp_le_u32 s43, {4*fastx}")
    A("s_cbranch_scc1 L_ffast")
    if fslp: A(f"s_sleep {fslp}")
    A("s_branch L_fpoll")
    A("L_ffast:")
    A("s_mov_b64 exec, s[62:63]")
    A(f"buffer_load_dwordx4 v[{G+8}:{G+11}], v3, s[32:35], s37 offen {ldpol}")
    A(f"s_sleep {fdelta}")
    A(f"buffer_load_dwordx4 v[{G+12}:{G+15}], v3, s[32:35], s37 offen {ldpol}")
    A("L_ff:")
    for j in range(2):
        r = G + 8 + 4*j
        A("s_mov_b64 exec, -1")
        A("s_waitcnt vmcnt(1)")
        check_tags(r, 8, 9, "vcc")
        A("s_andn2_b64 exec, s[62:63], vcc")
        for k in range(4): A(f"v_mov_b32 v{G+k}, v{r+k}")
        A("s_and_b64 s[62:63], s[62:63], vcc")
        A("s_cbranch_scc0 L_fdone")
        A("s_mov_b64 exec, s[62:63]")
        A(f"buffer_load_dwordx4 v[{r}:{r+3}], v3, s[32:35], s37 offen {ldpol}")
    A("s_sub_u32 s46, s46, 1")
    A("s_cbranch_scc0 L_ff")
    A("L_fdone:")
    A("s_mov_b64 exec, -1")
    if stamps >= 15: A("s_memrealtime s[86:87]")
    for k in range(4): A(f"v_and_b32 v{G+k}, s57, v{G+k}")
    for rot in (4, 8):
        A("s_nop 1")
        for k in range(4): A(f"v_add_f32_dpp v{G+k}, v{G+k}, v{G+k} row_ror:{rot} row_mask:0xf bank_mask:0xf")
    for sw in ("16", "32"):
        for k in range(4): A(f"v_mov_b32 v{G+4+k}, v{G+k}")
        A("s_nop 1")
        for k in range(4): A(f"v_permlane{sw}_swap_b32 v{G+k}, v{G+4+k}")
        for k in range(4): A(f"v_add_f32 v{G+k}, v{G+k}, v{G+4+k}")
    A(f"v_cvt_pk_bf16_f32 v{G}, v{G}, v{G+1}")
    A(f"v_cvt_pk_bf16_f32 v{G+1}, v{G+2}, v{G+3}")
    A("s_lshl_b32 s36, s21, 10")
    A("s_lshl_b32 s38, s39, 5")
    A("s_add_u32 s36, s36, s38")
    A("s_mov_b64 exec, 15")
    A(f"buffer_store_dwordx2 v[{G}:{G+1}], v15, s[52:55], s36 offen")
    A("s_cmp_lg_u32 s39, 0")
    A("s_cbranch_scc1 L_fend")
    A("v_mov_b32 v8, s56")
    A("s_mov_b64 exec, 1")
    A("buffer_store_dword v8, off, s[32:35], s47")
    A("L_fend:")
    if stamps > 3:
        A("s_mov_b64 exec, -1")
        A("s_cmp_lg_u32 s22, 3\ns_cbranch_scc1 L_done")
        A("s_waitcnt vmcnt(0)")
        stamp(3)
        stamp_store(range(3, min(stamps, 8)))
        if stamps >= 15:
            A("v_mov_b32 v10, s86\nv_mov_b32 v11, s87\ns_mov_b64 exec, 1")
            A("global_store_dwordx2 v9, v[10:11], s[90:91] offset:112")
    A("L_done:")
    A("s_endpgm")
    A(f""".section .rodata,"a"
.p2align 6
.amdhsa_kernel {KN}
  .amdhsa_next_free_vgpr 256
  .amdhsa_next_free_sgpr 100
  .amdhsa_accum_offset 256
  .amdhsa_group_segment_fixed_size 0
  .amdhsa_kernarg_size 64
  .amdhsa_user_sgpr_count 2
  .amdhsa_user_sgpr_kernarg_segment_ptr 1
  .amdhsa_system_sgpr_workgroup_id_x 1
  .amdhsa_float_denorm_mode_32 3
.end_amdhsa_kernel""")
    return "\n".join(L) + "\n"

if __name__ == "__main__":
    for spec in sys.argv[1:]:
        path, _, opts = spec.partition(":")
        kw = {}
        for p in filter(None, opts.split(",")):
            k, v = p.split("=")
            kw[k] = int(v) if v.lstrip("-").isdigit() else v
        open(path, "w").write(gen(**kw))
        print(path)
```

```python
import sys
KN = "standalone__low_rank_proj_linformer__decode_kernel"

HEADER = """; Kernarg layout for this problem (64 bytes, ptrs only, base s[0:1]):
"""

def gen(D=5, DV=None, stamps=0, epol="nt", fpol="nt", hthr=2, prio=1, slp=8, oslp=1, gslp=8, fslp=2,
        stpol="sc1", ldpol="sc1", kvpol="nt", qpol="", nosst=0, nosg=0, noo=0, noef=0, tlb=0, tlbat=2, fthr=None, tAR=22, tAO=25, tBR=36, tBO=40, npoll=4, NP=2, NL=2, dslp=1, trig=4, nowst=0, nowld=0, fastx=0, fdelta=8, noe=0, nof=0, etouch=0, ftouch=0, tb='15.16.17', mb='18.19.20.21', f4=0, e4=0, pf=0, pfpol='', pfw=1):
    TB = [int(x) for x in str(tb).split('.')]; MB = [int(x) for x in str(mb).split('.')]
    assert sorted(TB + MB) == list(range(15, 22))
    fthr = fthr or hthr
    DV = DV or D
    L = []
    A = L.append
    ESTR = 2064
    SW0 = 64 * ESTR
    SWS = 4224
    PSTR = 2112
    OB0 = SW0 + 4 * SWS
    SC0 = OB0 + 8192
    PD0 = SC0 + 1024
    CN0 = PD0 + 2048
    DS0 = CN0 + 128
    NDESC = NL + 16*NP + 1
    LDS = DS0 + 640
    assert NDESC * 8 <= 640 and 1 <= NL and NP + NL <= 6
    cS, cE, cP, cW, cT, cQ = 0, 32, 48, 64, 80, 84
    WS_EP = 0
    WS_SC = 1 << 16
    WS_P = 1 << 19
    WS_C = 1 << 15
    WS_W = 2 << 20
    WS_O = 1 << 20
    lab = [0]
    def newlab(p):
        lab[0] += 1
        return f"L_{p}{lab[0]}"
    def lds_wait(off, target, vaddr, vt, st, sc, sleep=2):
        l = newlab("w"); d = newlab("wd")
        A(f"s_mov_b32 {sc}, 0x40000")
        A(f"{l}:")
        A(f"ds_read_b32 {vt}, {vaddr} offset:{off}")
        A("s_waitcnt lgkmcnt(0)")
        A(f"v_readfirstlane_b32 {st}, {vt}")
        A("s_nop 0")
        A(f"s_cmp_ge_u32 {st}, {target}")
        A(f"s_cbranch_scc1 {d}")
        A(f"s_sub_u32 {sc}, {sc}, 1")
        A(f"s_cbranch_scc1 {d}")
        A(f"s_sleep {sleep}")
        A(f"s_branch {l}")
        A(f"{d}:")
    def lds_inc(off, vaddr, vone):
        A("s_mov_b64 exec, 1")
        A(f"ds_add_u32 {vaddr}, {vone} offset:{off}")
        A("s_mov_b64 exec, -1")
    def scat(dst, src, bits, sh, tmp, add=None):
        runs = []
        for i, b in enumerate(bits):
            if runs and runs[-1][1] + runs[-1][2] == b and runs[-1][0] + runs[-1][2] == i: runs[-1][2] += 1
            else: runs.append([i, b, 1])
        cur = add
        for i, b, n in runs:
            t = tmp if cur is not None else dst
            if len(runs) == 1: A(f"s_lshl_b32 {t}, {src}, {b + sh}")
            else:
                A(f"s_bfe_u32 {t}, {src}, {(n << 16) | i}")
                A(f"s_lshl_b32 {t}, {t}, {b + sh}")
            if cur is not None: A(f"s_add_u32 {dst}, {cur}, {t}")
            cur = dst
    scat_c = lambda v, bits, sh: sum(((v >> i) & 1) << (b + sh) for i, b in enumerate(bits))
    def stamp(i):
        if stamps and i < stamps:
            A(f"s_memrealtime s[{70+2*i}:{71+2*i}]")
    def stamp_store(idx):
        A("s_waitcnt lgkmcnt(0)")
        A("s_add_u32 s90, s18, 0x20000000\ns_addc_u32 s91, s19, 0")
        A("s_lshl_b32 s37, s2, 7\nv_mov_b32 v9, s37")
        for i in idx:
            A(f"v_mov_b32 v10, s{70+2*i}\nv_mov_b32 v11, s{71+2*i}")
            A("s_mov_b64 exec, 1")
            A(f"global_store_dwordx2 v9, v[10:11], s[90:91] offset:{8*i}")
            A("s_mov_b64 exec, -1")
            A("s_nop 1")

    A(HEADER + f"; @launch grid=(256,1,1) block=(512,1,1) lds={LDS}")
    A('.amdgcn_target "amdgcn-amd-amdhsa--gfx950"')
    A(".text")
    A(f".globl {KN}\n.p2align 8\n.type {KN},@function\n{KN}:")
    A("s_cmp_ge_u32 s2, 256")
    A("s_cbranch_scc1 L_done")
    A("s_load_dwordx16 s[4:19], s[0:1], 0")
    stamp(0)
    A("v_lshrrev_b32 v1, 6, v0")
    A("v_and_b32 v0, 63, v0")
    A("v_readfirstlane_b32 s3, v1")
    A("s_and_b32 s20, s2, 15")
    A("s_lshr_b32 s21, s2, 4")
    A("v_lshrrev_b32 v4, 4, v0")
    A("v_and_b32 v5, 15, v0")
    A(f"v_mov_b32 v6, {CN0}")
    A("v_mov_b32 v7, 1")
    A("v_lshlrev_b32 v2, 4, v0")
    A("s_cmp_ge_u32 s3, 4")
    A("s_cbranch_scc1 L_helper")

    RING = 16; Q = 48; P = 64; X0, X1, Y, T = 72, 73, 74, 75
    M2 = 76; SA = 77; WA = 78; W = 79; ACC = 80; TM = 88; OA = 96; CA = 97; LP = 98; DA = 99; DV0 = 100
    A("v_add_u32 v3, 4096, v2")
    A("v_lshlrev_b32 v8, 4, v5")
    A("s_lshl_b32 s36, s21, 24")
    scat("s36", "s20", MB, 0, "s37", add="s36")
    A("s_lshl_b32 s37, s3, 13")
    A("s_add_u32 s36, s36, s37")
    A("s_lshl_b32 s39, s21, 10")
    A("s_waitcnt lgkmcnt(0)")
    A("s_mov_b32 s24, s6\ns_mov_b32 s25, s7\ns_mov_b32 s26, 0x10000000\ns_mov_b32 s27, 0x20000")
    A("s_mov_b32 s32, s4\ns_mov_b32 s33, s5\ns_mov_b32 s34, 16384\ns_mov_b32 s35, 0x20000")
    def kvload(idx, srd, soff):
        s = idx % 8
        A(f"buffer_load_dwordx4 v[{RING+4*s}:{RING+4*s+3}], v{2 + s//4}, s[{srd}:{srd+3}], {soff} offen offset:{(s%4)*1024} {kvpol}")
    for h in range(4):
        A(f"buffer_load_dwordx4 v[{Q+4*h}:{Q+4*h+3}], v8, s[32:35], s39 offen offset:{256*h} {qpol}")
    for u in range(D): kvload(u, 24, "s36")
    A("s_mov_b32 s28, s8\ns_mov_b32 s29, s9\ns_mov_b32 s30, 0x10000000\ns_mov_b32 s31, 0x20000")
    if prio: A(f"s_setprio {prio}")
    A("v_and_b32 v9, 1, v0")
    A("v_sub_u32 v10, 0, v9")
    A(f"v_and_b32 v{M2}, 0xffff0000, v10")
    A(f"v_mul_u32_u24 v{SA}, {PSTR}, v9")
    A("v_bfe_u32 v10, v0, 2, 2")
    A("v_lshlrev_b32 v10, 2, v10")
    A("v_add_u32 v10, v10, v4")
    A("s_lshl_b32 s37, s3, 5")
    A("v_add_u32 v10, s37, v10")
    A(f"v_lshl_add_u32 v{SA}, v10, 1, v{SA}")
    A(f"v_add_u32 v{SA}, {SW0}, v{SA}")
    A("v_and_b32 v10, 7, v0")
    A("v_lshlrev_b32 v10, 2, v10")
    A("v_add_u32 v10, v10, v4")
    A(f"v_lshlrev_b32 v{LP}, 2, v10")
    A("v_add_u32 v10, s37, v10")
    A(f"v_lshlrev_b32 v{WA}, 2, v10")
    A(f"v_add_u32 v{WA}, {SW0}, v{WA}")
    A("v_lshlrev_b32 v10, 5, v5")
    A("v_lshl_add_u32 v10, v4, 3, v10")
    A("s_lshl_b32 s37, s3, 9")
    A("v_add_u32 v10, s37, v10")
    A(f"v_add_u32 v{OA}, {OB0}, v10")
    for k in range(8): A(f"v_mov_b32 v{ACC+k}, 0")
    A(f"v_mov_b32 v{CA}, v6")
    A("s_cmp_eq_u32 s3, 0")
    A("s_cselect_b32 s48, 1, 0")
    A("s_mov_b32 s49, 0")
    A("s_mov_b32 s40, 0xffff0000")
    A("s_barrier")
    A("s_mov_b32 s38, 0")
    A("s_mov_b32 s41, s36")

    def next_off():
        A("s_add_u32 s43, s38, 1")
        A("s_lshr_b32 s44, s43, 3")
        A("s_and_b32 s43, s43, 7")
        A("s_lshl_b32 s44, s44, 22")
        A("s_add_u32 s42, s36, s44")
        scat("s42", "s43", TB, 0, "s44", add="s42")
    def tick():
        l = newlab("nt")
        A("s_cmp_eq_u32 s48, 0")
        A(f"s_cbranch_scc1 {l}")
        lds_inc(cT, "v6", "v7")
        A(f"{l}:")
    def stage_done():
        lds_inc(cS, f"v{CA}", "v7")
        A(f"v_add_u32 v{CA}, 4, v{CA}")

    def kstep(cur_srd, nxt_srd, nxt_off, Din, Dout):
        issued = Din
        for u in range(8):
            A(f"s_waitcnt vmcnt({issued - u - 1})")
            want = u + 1 + (Din if u < 7 else Dout) if Din == Dout else u + 1 + Din + (Dout - Din) * (u + 1) // 8
            while issued < want:
                if issued < 8: kvload(issued, cur_srd, "s41")
                else: kvload(issued, nxt_srd, nxt_off)
                issued += 1
            r = RING + 4*u
            A(f"v_dot2_f32_bf16 v{P+u}, v{r}, v{Q}, 0")
            for m in range(1, 4):
                A(f"v_dot2_f32_bf16 v{P+u}, v{r+m}, v{Q+m}, v{P+u}")
            if u % 4 == 3:
                e = u // 4; p = P + 4*e
                A(f"v_add_f32_dpp v{X0}, v{p}, v{p} row_ror:8 row_mask:0xf bank_mask:0x3")
                A(f"v_add_f32_dpp v{X1}, v{p+1}, v{p+1} row_ror:8 row_mask:0xf bank_mask:0x3")
                A("s_nop 0")
                A(f"v_add_f32_dpp v{X0}, v{p+2}, v{p+2} row_ror:8 row_mask:0xf bank_mask:0xc")
                A(f"v_add_f32_dpp v{X1}, v{p+3}, v{p+3} row_ror:8 row_mask:0xf bank_mask:0xc")
                A(f"s_nop 0")
                A(f"v_add_f32_dpp v{Y}, v{X0}, v{X0} row_half_mirror row_mask:0xf bank_mask:0x5")
                A("s_nop 1")
                A(f"v_add_f32_dpp v{Y}, v{X1}, v{X1} row_half_mirror row_mask:0xf bank_mask:0xa")
                A("s_nop 1")
                A(f"v_add_f32_dpp v{Y}, v{Y}, v{Y} quad_perm:[1,0,3,2] row_mask:0xf bank_mask:0xf")
                A("s_nop 1")
                A(f"v_add_f32_dpp v{Y}, v{Y}, v{Y} quad_perm:[2,3,0,1] row_mask:0xf bank_mask:0xf")
                A(f"v_and_b32 v{T}, v{Y}, v{M2}")
                A(f"v_sub_f32 v{T}, v{Y}, v{T}")
                A(f"ds_write_b16_d16_hi v{SA}, v{T} offset:{32*e}")
        assert issued == 8 + Dout
        A(f"v_add_u32 v{SA}, 256, v{SA}")

    A("L_kloop:")
    next_off()
    kstep(24, 24, "s42", D, D)
    tick()
    A("s_mov_b32 s41, s42")
    A("s_add_u32 s38, s38, 1")
    A("s_and_b32 s43, s38, 7")
    A("s_cbranch_scc1 L_knohead")
    stage_done()
    A(f"v_add_u32 v{SA}, {SWS - 2048}, v{SA}")
    for k in range(12): A(f"v_mov_b32 v{Q+k}, v{Q+4+k}")
    A("L_knohead:")
    A("s_cmp_lt_u32 s38, 31")
    A("s_cbranch_scc1 L_kloop")
    kstep(24, 28, "s36", D, DV)
    tick()
    stage_done()
    stamp(1)
    def vproc(u):
        r = RING + 4*u
        for m in range(4):
            A(f"v_lshlrev_b32 v{TM+2*m}, 16, v{r+m}")
            A(f"v_and_b32 v{TM+2*m+1}, s40, v{r+m}")
        for k in range(8):
            A(f"v_fmac_f32_dpp v{ACC+k}, v{W}, v{TM+k} row_newbcast:{u} row_mask:0xf bank_mask:0xf")
    def vpart(u0, u1, drain=False, pull=False):
        for u in range(u0, u1):
            if drain:
                A(f"s_waitcnt vmcnt({7-u})")
            else:
                A(f"s_waitcnt vmcnt({DV-1})")
                if u + DV < 8: kvload(u + DV, 28, "s41")
                else: kvload(u + DV, 28, "s42")
            if u == 0: A("s_waitcnt lgkmcnt(0)")
            if pull and u == u1 - 1:
                A("s_mov_b64 exec, 1")
                A(f"ds_add_rtn_u32 v{DV0}, v6, v7 offset:{cQ}")
                A("s_mov_b64 exec, -1")
            vproc(u)
    def vstep():
        A(f"ds_read_b32 v{W}, v{WA}")
        vpart(0, 8)
        A(f"v_add_u32 v{WA}, 512, v{WA}")
    def vhead_end():
        A("s_nop 1")
        for k in range(4): A(f"v_permlane32_swap_b32 v{ACC+k}, v{ACC+k+4}")
        for k in range(4): A(f"v_add_f32 v{ACC+k}, v{ACC+k}, v{ACC+k+4}")
        A("s_nop 0")
        for k in range(2): A(f"v_permlane16_swap_b32 v{ACC+k}, v{ACC+k+2}")
        for k in range(2): A(f"v_add_f32 v{TM+k}, v{ACC+k}, v{ACC+k+2}")
        A(f"ds_write_b64 v{OA}, v[{TM}:{TM+1}]")
        stage_done()
    A("s_mov_b32 s38, 0")
    A("s_mov_b32 s41, s36")
    A("L_vhead:")
    lds_wait(cW - 16, 4, f"v{CA}", f"v{T}", "s43", "s46")
    A("L_vloop:")
    next_off()
    vstep()
    tick()
    A("s_mov_b32 s41, s42")
    A("s_add_u32 s38, s38, 1")
    A(f"s_cmp_eq_u32 s38, {31 - NP - NL}")
    A("s_cbranch_scc1 L_dyn")
    A("s_and_b32 s43, s38, 7")
    A("s_cbranch_scc1 L_vloop")
    vhead_end()
    for k in range(8): A(f"v_mov_b32 v{ACC+k}, 0")
    A(f"v_add_u32 v{WA}, {SWS - 4096}, v{WA}")
    A(f"v_add_u32 v{OA}, 2048, v{OA}")
    A("s_branch L_vhead")
    A("L_dyn:")
    A(f"ds_read_b32 v{W}, v{WA}")
    vpart(0, 8 - DV, pull=True)
    A("s_waitcnt lgkmcnt(0)")
    A(f"v_readfirstlane_b32 s43, v{DV0}")
    A("s_mov_b32 s46, 0x40000")
    A("s_and_b32 s45, s43, 3")
    A("s_lshr_b32 s43, s43, 2")
    A("s_lshl_b32 s43, s43, 3")
    A(f"s_add_u32 s43, s43, {DS0}")
    A(f"v_mov_b32 v{DA}, s43")
    A("L_dq:")
    A(f"ds_read_b32 v{DV0}, v{DA}")
    A("s_waitcnt lgkmcnt(0)")
    A(f"v_readfirstlane_b32 s43, v{DV0}")
    A("s_nop 0")
    A("s_cmp_lg_u32 s43, 0")
    A("s_cbranch_scc1 L_dq_ok")
    A("s_sub_u32 s46, s46, 1")
    A("s_cbranch_scc1 L_drain")
    A("s_sleep 1")
    A("s_branch L_dq")
    A("L_dq_ok:")
    A("s_cmp_eq_u32 s43, -1")
    A("s_cbranch_scc1 L_drain")
    A("s_lshl_b32 s44, s45, 13")
    A("s_add_u32 s42, s43, s44")
    A("s_sub_u32 s42, s42, 1")
    vpart(8 - DV, 8)
    lds_wait(4, 1, f"v{DA}", f"v{DV0}", "s43", "s46", sleep=1)
    A("s_lshl_b32 s45, s45, 7")
    A("s_add_u32 s43, s43, s45")
    A(f"v_add_u32 v{WA}, s43, v{LP}")
    A("s_mov_b32 s41, s42")
    A("s_branch L_dyn")
    A("L_drain:")
    vpart(8 - DV, 8, drain=True)
    vhead_end()
    if stamps:
        stamp(2)
        if stamps >= 12:
            A("s_waitcnt lgkmcnt(0)")
            A("s_add_u32 s90, s18, 0x20000000\ns_addc_u32 s91, s19, 0")
            A("s_lshl_b32 s37, s2, 7\ns_lshl_b32 s38, s3, 3\ns_add_u32 s37, s37, s38\nv_mov_b32 v9, s37")
            A("v_mov_b32 v10, s74\nv_mov_b32 v11, s75\ns_mov_b64 exec, 1")
            A("global_store_dwordx2 v9, v[10:11], s[90:91] offset:64\ns_mov_b64 exec, -1\ns_nop 1")
        A("s_cmp_lg_u32 s3, 0\ns_cbranch_scc1 L_done")
        stamp_store(range(min(stamps, 3)))
    A("s_endpgm")

    F0 = 128
    EA, SB, PA, WW, M = 10, 11, 12, 13, 16
    TG = 20
    AC = 24
    BB = 40
    RA = 56
    PV = 88
    G = 56
    A("L_helper:")
    A("s_sub_u32 s22, s3, 4")
    A("v_mov_b32 v8, 0")
    A("v_lshl_add_u32 v9, v0, 2, v6")
    for i in range(3): A(f"ds_write_b32 v9, v8 offset:{256*i}")
    A("s_waitcnt lgkmcnt(0)")
    A("s_barrier")
    A("s_mov_b32 s32, s18\ns_mov_b32 s33, s19\ns_mov_b32 s34, 0x40000000\ns_mov_b32 s35, 0x20000")
    A("s_lshl_b32 s47, s21, 8")
    A(f"buffer_load_dword v{TG}, off, s[32:35], s47 sc1")
    A(f"s_add_u32 s68, s47, {WS_C}")
    A("s_or_b32 s43, s20, s22")
    A("s_cbranch_scc1 L_noinit")
    A("s_mov_b64 exec, 1")
    A("buffer_store_dword v8, off, s[32:35], s68 sc1")
    A("s_mov_b64 exec, -1")
    A("L_noinit:")
    A("s_mov_b32 s24, s10\ns_mov_b32 s25, s11\ns_mov_b32 s26, 0x200000\ns_mov_b32 s27, 0x20000")
    A("s_mov_b32 s28, s12\ns_mov_b32 s29, s13\ns_mov_b32 s30, 0x200000\ns_mov_b32 s31, 0x20000")
    A("s_mov_b32 s52, s14\ns_mov_b32 s53, s15\ns_mov_b32 s54, 16384\ns_mov_b32 s55, 0x20000")
    A("s_lshl_b32 s36, s22, 19")
    scat("s37", "s20", MB, -7, "s43")
    A("s_add_u32 s36, s36, s37")
    A("v_and_b32 v8, 1, v4")
    A(f"v_lshlrev_b32 v8, {TB[0]-7}, v8")
    A("v_lshrrev_b32 v9, 1, v4")
    A(f"v_lshlrev_b32 v9, {TB[1]-7}, v9")
    A("v_add_u32 v8, v8, v9")
    A("v_lshl_add_u32 v124, v5, 4, v8")
    A(f"v_add_u32 v125, {1 << (TB[2]-7)}, v124")
    A(f"s_mul_i32 s38, s22, {16*ESTR}")
    if tlb:
        A("s_mov_b32 s64, s6\ns_mov_b32 s65, s7\ns_mov_b32 s66, 0x10000000\ns_mov_b32 s67, 0x20000")
        A("s_mov_b32 s92, s8\ns_mov_b32 s93, s9\ns_mov_b32 s94, 0x10000000\ns_mov_b32 s95, 0x20000")
        A("s_lshl_b32 s44, s21, 24\ns_lshl_b32 s45, s20, 18\ns_add_u32 s44, s44, s45\ns_lshl_b32 s45, s22, 22\ns_add_u32 s44, s44, s45")
    XS = 8192 + 16
    if pf:
        A("s_lshl_b32 s43, s21, 2")
        A("s_add_u32 s43, s43, s22")
        A("s_lshl_b32 s43, s43, 15")
        A("s_add_u32 s43, s43, s37")
        for i, srd in enumerate((24, 28)):
            for hf in range(2):
                if (noe and i == 0) or (nof and i == 1): continue
                A(f"buffer_load_dwordx4 v[{F0+8*i+4*hf}:{F0+8*i+4*hf+3}], v{124+hf}, s[{srd}:{srd+3}], s43 offen {pfpol}")
        if pfw: A("s_waitcnt vmcnt(0)")
        if pfw > 1: A(f"s_sleep {pfw}")
    if e4:
        A("v_lshlrev_b32 v124, 15, v4")
        A("v_lshl_add_u32 v124, v5, 4, v124")
        A(f"s_mul_i32 s38, s22, {4*XS}")
        for x in range(4):
            for t in range(8):
                A(f"s_add_u32 s43, s36, {x*131072 + scat_c(t, TB, -7)}")
                A(f"s_add_u32 m0, s38, {x*XS + 1024*t}")
                A(f"s_waitcnt vmcnt({hthr-1})")
                if not (noef or noe): A(f"buffer_load_dwordx4 v124, s[24:27], s43 offen {epol} lds")
    for rr in range(0 if e4 else 16):
        for hf in range(2):
            A(f"s_add_u32 m0, s38, {rr*ESTR + 1024*hf}")
            A(f"s_waitcnt vmcnt({hthr-1})")
            if not (noef or noe): A(f"buffer_load_dwordx4 v{124+hf}, s[24:27], s36 offen {epol} lds")
        A("s_add_u32 s36, s36, 32768")
    A(f"v_lshlrev_b32 v3, {15 if f4 else 19}, v4")
    A("v_lshl_add_u32 v3, v5, 4, v3")
    A(f"v_add_u32 v126, {1 << (TB[0]-7)}, v3")
    scat("s36", "s22", TB[1:], -7, "s43", add="s37")
    for t in range(16):
        if ftouch and t % ftouch == 0:
            if t == 0:
                A("v_lshlrev_b32 v122, 15, v0")
                A("s_lshl_b32 s44, s22, 19")
                A("v_add_u32 v122, s44, v122")
            A(f"s_mov_b64 exec, {(1 << ftouch) - 1}")
            A("buffer_load_dword v123, v122, s[28:31], s36 offen nt")
            A("s_mov_b64 exec, -1")
        for tau in range(2):
            A(f"s_waitcnt vmcnt({fthr-1})")
            r = F0 + 64*tau + 4*t
            if not (noef or nof): A(f"buffer_load_dwordx4 v[{r}:{r+3}], v{126 if tau else 3}, s[28:31], s36 offen {fpol}")
        A(f"s_add_u32 s36, s36, {131072 if f4 else 32768}")
    if noef or nof: A("s_waitcnt vmcnt(0)")
    A(f"v_readfirstlane_b32 s56, v{TG}\ns_nop 0")
    A("s_add_u32 s56, s56, 0x01010101")
    for k in range(4):
        A(f"s_bfe_u32 s43, s56, {(8 << 16) | (8*k)}")
        A(f"v_mov_b32 v{TG+k}, s43")
    A("s_mov_b32 s57, 0xffffff00")
    A("s_mov_b32 s58, 0x0c0c0400")
    A("s_mov_b32 s59, 0x04000c0c")
    if e4:
        A(f"s_mul_i32 s36, s22, {4*XS}")
        A("v_lshrrev_b32 v8, 2, v5")
        A(f"v_mul_u32_u24 v{EA}, {XS}, v8")
        A("v_and_b32 v8, 3, v5")
        A(f"v_lshl_add_u32 v{EA}, v8, 8, v{EA}")
    else:
        A(f"s_mul_i32 s36, s22, {16*ESTR}")
        A(f"v_mul_u32_u24 v{EA}, {ESTR}, v5")
    A(f"v_lshl_add_u32 v{EA}, v4, 4, v{EA}")
    A(f"v_add_u32 v{EA}, s36, v{EA}")
    A("v_and_b32 v8, 1, v0")
    A(f"v_mul_u32_u24 v{SB}, {PSTR}, v8")
    A("v_bfe_u32 v8, v0, 1, 1")
    A(f"v_mul_u32_u24 v8, {SWS}, v8")
    A(f"v_add_u32 v{SB}, v{SB}, v8")
    A(f"v_lshl_add_u32 v{SB}, v4, 4, v{SB}")
    A(f"v_add_u32 v{SB}, {SW0}, v{SB}")
    A("v_bfe_u32 v8, v0, 3, 1")
    A(f"v_lshlrev_b32 v{PA}, 8, v8")
    A(f"v_lshl_add_u32 v{PA}, v4, 6, v{PA}")
    A(f"v_add_u32 v{PA}, {PD0}, v{PA}")
    A("v_and_b32 v8, 7, v0")
    A(f"v_lshlrev_b32 v{WW}, 2, v8")
    A(f"v_lshl_add_u32 v{WW}, v4, 7, v{WW}")
    A("s_lshl_b32 s36, s22, 10")
    A(f"v_add_u32 v{WW}, s36, v{WW}")
    A(f"v_add_u32 v{WW}, {SW0}, v{WW}")
    A("v_and_b32 v9, 1, v0")
    A("v_lshlrev_b32 v9, 4, v9")
    A("v_mov_b32 v14, 0xffff")
    A("v_lshlrev_b32 v9, v9, v14")
    A("v_bfe_u32 v8, v0, 1, 2")
    for m in range(4):
        A(f"v_cmp_eq_u32 vcc, {m}, v8")
        A("s_nop 1")
        A(f"v_cndmask_b32 v{M+m}, 0, v9, vcc")
    A("s_lshl_b32 s60, s21, 14")
    A(f"s_add_u32 s60, s60, {WS_SC}")
    A("s_lshl_b32 s61, s21, 15")
    A(f"s_add_u32 s61, s61, {WS_O}")
    if stamps > 4: stamp(4)

    def put_tags(r):
        for k in range(4): A(f"v_and_or_b32 v{r+k}, v{r+k}, s57, v{TG+k}")
    def check_tags(r, t0, t1, dst):
        A(f"v_perm_b32 v{t0}, v{r+1}, v{r}, s58")
        A(f"v_perm_b32 v{t1}, v{r+3}, v{r+2}, s59")
        A(f"v_or_b32 v{t0}, v{t0}, v{t1}")
        A(f"v_cmp_ne_u32 {dst}, s56, v{t0}")

    def epass(a):
        lds_wait(cS + 8*a, 4, "v6", "v8", "s43", "s46", sleep=slp)
        lds_wait(cS + 8*a + 4, 4, "v6", "v8", "s43", "s46", sleep=slp)
        for k in range(4): A(f"v_mov_b32 v{AC+k}, 0")
        for ch in range(8):
            for kk in range(4):
                A(f"ds_read_b128 v[{RA+8*kk}:{RA+8*kk+3}], v{EA} offset:{ch*1024 + kk*64 if e4 else (4*ch+kk)*64}")
                A(f"ds_read_b128 v[{RA+8*kk+4}:{RA+8*kk+7}], v{SB} offset:{2*a*SWS + (4*ch+kk)*64}")
            for kk in range(4):
                A(f"s_waitcnt lgkmcnt({6-2*kk})")
                A(f"v_mfma_f32_16x16x32_bf16 v[{AC}:{AC+3}], v[{RA+8*kk}:{RA+8*kk+3}], v[{RA+8*kk+4}:{RA+8*kk+7}], v[{AC}:{AC+3}]")
        A("s_lshl_b32 s36, s22, 6")
        A("v_bfe_u32 v9, v0, 1, 1")
        A("v_lshlrev_b32 v8, 4, v4")
        A("v_lshl_add_u32 v8, v9, 8, v8")
        A("v_add_u32 v8, s36, v8")
        A(f"v_add_u32 v8, {SC0 + 512*a}, v8")
        A("s_nop 4")
        for k in range(4):
            A(f"v_add_f32_dpp v{AC+4+k}, v{AC+k}, v{AC+k} quad_perm:[1,0,3,2] row_mask:0xf bank_mask:0xf")
        A(f"ds_write_b128 v8, v[{AC+4}:{AC+7}]")
        A("s_mov_b64 exec, 1")
        A(f"ds_add_rtn_u32 v8, v6, v7 offset:{cE + 4*a}")
        A("s_mov_b64 exec, -1")
        A("s_waitcnt lgkmcnt(0)")
        A("v_readfirstlane_b32 s43, v8")
        sk = newlab("nopub")
        A("s_nop 0")
        A(f"s_cmp_lg_u32 s43, 3")
        A(f"s_cbranch_scc1 {sk}")
        A(f"v_add_u32 v9, {SC0 + 512*a}, v2")
        A("s_mov_b32 exec_hi, 0")
        A(f"ds_read_b128 v[{G}:{G+3}], v9")
        A("s_lshl_b32 s38, s20, 9")
        A("s_add_u32 s37, s60, s38")
        A(f"s_add_u32 s37, s37, {8192*a}")
        A("s_waitcnt lgkmcnt(0)")
        put_tags(G)
        if not nosst: A(f"buffer_store_dwordx4 v[{G}:{G+3}], v2, s[32:35], s37 offen {stpol}")
        A("s_mov_b64 exec, -1")
        A("s_nop 1")
        A(f"{sk}:")

    def pw(a):
        sk = newlab("nop"); oth = newlab("oth"); com = newlab("com")
        A(f"s_cmp_lg_u32 s22, 0")
        A(f"s_cbranch_scc1 {sk}")
        A("s_lshl_b32 s39, s21, 10")
        A(f"s_add_u32 s39, s39, {WS_P + 512*a}")
        A(f"s_add_u32 s43, s21, {8*a}")
        A("s_and_b32 s43, s43, 15")
        A("s_cmp_lg_u32 s43, s20")
        A(f"s_cbranch_scc1 {oth}")
        lds_wait(cT, (tAR, tBR)[a], "v6", "v8", "s43", "s46", sleep=slp)
        A(f"s_add_u32 s37, s60, {8192*a}")
        A("s_add_u32 s38, s37, 4096")
        l = newlab("gp"); d = newlab("gpd")
        A(f"s_mov_b32 s46, {0 if nosst else 0x8000}")
        if nosg: A(f"s_branch {d}")
        A(f"{l}:")
        for i in range(8):
            A(f"buffer_load_dwordx4 v[{G+4*i}:{G+4*i+3}], v2, s[32:35], {'s37' if i < 4 else 's38'} offen offset:{1024*(i%4)} {ldpol}")
        A("s_mov_b64 s[62:63], 0")
        for i in range(8):
            A(f"s_waitcnt vmcnt({7-i})")
            check_tags(G+4*i, 8, 9, "vcc")
            A("s_or_b64 s[62:63], s[62:63], vcc")
        A("s_cmp_eq_u64 s[62:63], 0")
        A(f"s_cbranch_scc1 {d}")
        A("s_sub_u32 s46, s46, 1")
        A(f"s_cbranch_scc1 {d}")
        A(f"s_sleep {gslp}")
        A(f"s_branch {l}")
        A(f"{d}:")
        for k in range(32): A(f"v_and_b32 v{G+k}, s57, v{G+k}")
        for st in (16, 8, 4):
            for k in range(st): A(f"v_add_f32 v{G+k}, v{G+k}, v{G+st+k}")
        for k in range(4): A(f"v_mov_b32 v{G+4+k}, v{G+k}")
        A("s_nop 1")
        for k in range(4): A(f"v_permlane32_swap_b32 v{G+k}, v{G+4+k}")
        for k in range(4): A(f"v_add_f32 v{G+k}, v{G+k}, v{G+4+k}")
        A(f"v_max_f32 v{G+4}, v{G}, v{G+1}")
        A(f"v_max3_f32 v{G+4}, v{G+4}, v{G+2}, v{G+3}")
        for rot in (8, 4, 2, 1):
            A("s_nop 1")
            A(f"v_max_f32_dpp v{G+4}, v{G+4}, v{G+4} row_ror:{rot} row_mask:0xf bank_mask:0xf")
        A("s_mov_b32 s36, 0x3e0293ee")
        for k in range(4):
            A(f"v_sub_f32 v{G+k}, v{G+k}, v{G+4}")
            A(f"v_mul_f32 v{G+k}, s36, v{G+k}")
            A(f"v_exp_f32 v{G+k}, v{G+k}")
        A("s_nop 0")
        A(f"v_add_f32 v{G+4}, v{G}, v{G+1}")
        A(f"v_add_f32 v{G+5}, v{G+2}, v{G+3}")
        A(f"v_add_f32 v{G+4}, v{G+4}, v{G+5}")
        for rot in (8, 4, 2, 1):
            A("s_nop 1")
            A(f"v_add_f32_dpp v{G+4}, v{G+4}, v{G+4} row_ror:{rot} row_mask:0xf bank_mask:0xf")
        A(f"v_rcp_f32 v{G+4}, v{G+4}")
        A("s_nop 0")
        for k in range(4): A(f"v_mul_f32 v{G+k}, v{G+k}, v{G+4}")
        put_tags(G)
        A("s_mov_b32 exec_hi, 0")
        A(f"buffer_store_dwordx4 v[{G}:{G+3}], v2, s[32:35], s39 offen {stpol}")
        A("s_mov_b64 exec, -1")
        A(f"s_branch {com}")
        A(f"{oth}:")
        lds_wait(cT, (tAO, tBO)[a], "v6", "v8", "s43", "s46", sleep=slp)
        A("v_and_b32 v3, 0x1ff, v2")
        l = newlab("pp")
        A(f"s_mov_b32 s46, {0 if nosst else 0x8000}")
        A(f"{l}:")
        A(f"buffer_load_dwordx4 v[{G}:{G+3}], v3, s[32:35], s39 offen {ldpol}")
        A("s_waitcnt vmcnt(0)")
        check_tags(G, 8, 9, "vcc")
        A("s_cmp_eq_u64 vcc, 0")
        A(f"s_cbranch_scc1 {com}")
        A("s_sub_u32 s46, s46, 1")
        A(f"s_cbranch_scc1 {com}")
        A(f"s_sleep {gslp}")
        A(f"s_branch {l}")
        A(f"{com}:")
        A("v_lshrrev_b32 v8, 5, v0")
        A("v_sub_u32 v9, 0, v8")
        A("v_and_b32 v9, 0xffff0000, v9")
        A("v_mov_b32 v14, 0x03020302")
        for k in range(4):
            A(f"v_and_b32 v{G+4+k}, s57, v{G+k}")
            A(f"v_and_b32 v{G+8}, v{G+4+k}, v9")
            A(f"v_sub_f32 v{G+4+k}, v{G+4+k}, v{G+8}")
            A(f"v_perm_b32 v{G+4+k}, v{G+4+k}, v{G+4+k}, v14")
        A("v_lshlrev_b32 v8, 8, v8")
        A(f"v_lshl_add_u32 v8, v5, {2 if f4 else 4}, v8")
        A("v_and_b32 v9, 1, v4")
        A("v_lshl_add_u32 v8, v9, 9, v8")
        A(f"v_add_u32 v8, {PD0 + 1024*a}, v8")
        if f4:
            for k in range(4): A(f"ds_write_b32 v8, v{G+4+k} offset:{64*k}")
        else:
            A(f"ds_write_b128 v8, v[{G+4}:{G+7}]")
        lds_inc(cP + 4*a, "v6", "v7")
        A(f"{sk}:")
        lds_wait(cP + 4*a, 1, "v6", "v8", "s43", "s46", sleep=slp)
        for hb in range(2):
            for i in range(4):
                A(f"ds_read_b128 v[{PV+16*hb+4*i}:{PV+16*hb+4*i+3}], v{PA} offset:{1024*a + 512*hb + 16*i}")
        for k in range(16): A(f"v_mov_b32 v{AC+k}, 0")
        A("s_waitcnt vmcnt(0) lgkmcnt(0)")
        for t in range(16):
            b = BB + 8*(t % 2)
            for hb in range(2):
                for m in range(4): A(f"v_and_b32 v{b+4*hb+m}, v{PV+16*hb+t}, v{M+m}")
            A("s_nop 0")
            for hb in range(2):
                for tau in range(2):
                    r = F0 + 64*tau + 4*t
                    ac = AC + 8*hb + 4*tau
                    if hb == 1 and tau == 0 and False: A("s_nop 0")
                    A(f"v_mfma_f32_16x16x32_bf16 v[{ac}:{ac+3}], v[{r}:{r+3}], v[{b+4*hb}:{b+4*hb+3}], v[{ac}:{ac+3}]")
        A("s_nop 7\ns_nop 1")
        for k in range(16):
            A(f"v_add_f32_dpp v{RA+k}, v{AC+k}, v{AC+k} row_ror:8 row_mask:0xf bank_mask:0xf")
        for k in range(16):
            hb, tau, rr = k // 8, (k // 4) % 2, k % 4
            A(f"ds_write_b32 v{WW}, v{RA+k} offset:{(2*a+hb)*SWS + tau*512 + rr*32}")
        if a == 1:
            sk2 = newlab("now")
            A(f"s_cmp_lt_u32 s22, {(8 - NP) // 2}")
            A(f"s_cbranch_scc1 {sk2}")
            A("v_and_b32 v8, 8, v0")
            A("v_cmp_ne_u32 vcc, 0, v8")
            A("v_lshlrev_b32 v8, 6, v8")
            A("v_and_b32 v9, 7, v0")
            A("v_lshl_add_u32 v8, v9, 4, v8")
            A("v_lshl_add_u32 v8, v4, 7, v8")
            for k in range(4): A(f"v_cndmask_b32 v{AC+k}, v{RA+8+k}, v{RA+12+k}, vcc")
            put_tags(AC)
            A("s_lshl_b32 s36, s21, 16")
            A("s_lshl_b32 s37, s20, 12")
            A("s_add_u32 s36, s36, s37")
            A("s_lshl_b32 s37, s22, 10")
            A("s_add_u32 s36, s36, s37")
            A(f"s_add_u32 s36, s36, {WS_W}")
            if NP % 2:
                A(f"s_cmp_eq_u32 s22, {(8 - NP) // 2}")
                A("s_cselect_b64 exec, vcc, -1")
            if not nowst: A(f"buffer_store_dwordx4 v[{AC}:{AC+3}], v8, s[32:35], s36 offen {stpol}")
            A("s_mov_b64 exec, -1")
            A(f"{sk2}:")
        A("s_mov_b64 exec, 1")
        A(f"ds_add_u32 v6, v7 offset:{cW + 8*a}")
        A(f"ds_add_u32 v6, v7 offset:{cW + 8*a + 4}")
        A("s_mov_b64 exec, -1")

    epass(0)
    if stamps > 5: stamp(5)
    pw(0)
    if stamps > 6: stamp(6)
    epass(1)
    pw(1)
    if stamps > 7: stamp(7)
    if noo: A("s_endpgm")
    A("s_cmp_eq_u32 s22, 3")
    A("s_cbranch_scc1 L_final")
    A("s_cmp_lt_u32 s22, 2")
    A("s_cbranch_scc1 L_disp")
    A("v_lshrrev_b32 v8, 5, v0")
    A("v_and_b32 v9, 31, v0")
    A("v_lshlrev_b32 v9, 4, v9")
    A("v_lshl_add_u32 v9, v8, 11, v9")
    A(f"v_add_u32 v15, {OB0}, v9")
    A("s_lshl_b32 s38, s20, 11")
    A("s_add_u32 s37, s61, s38")
    for a in range(2):
        lds_wait(cS + 16 + 8*a, 4, "v6", "v8", "s43", "s46", sleep=slp)
        lds_wait(cS + 16 + 8*a + 4, 4, "v6", "v8", "s43", "s46", sleep=(oslp if a else slp))
        r = G + 16*a
        for w in range(4): A(f"ds_read_b128 v[{r+4*w}:{r+4*w+3}], v15 offset:{4096*a + 512*w}")
        if a == 1:
            A(f"buffer_store_dwordx4 v[{G}:{G+3}], v2, s[32:35], s37 offen {stpol}")
        A("s_waitcnt lgkmcnt(0)")
        for k in range(4):
            A(f"v_add_f32 v{r+k}, v{r+k}, v{r+4+k}")
            A(f"v_add_f32 v{r+8+k}, v{r+8+k}, v{r+12+k}")
        for k in range(4): A(f"v_add_f32 v{r+k}, v{r+k}, v{r+8+k}")
        put_tags(r)
    A(f"buffer_store_dwordx4 v[{G+16}:{G+19}], v2, s[32:35], s37 offen offset:1024 {stpol}")
    if stamps >= 15:
        A("s_memrealtime s[70:71]\ns_waitcnt vmcnt(0)\ns_memrealtime s[72:73]\ns_waitcnt lgkmcnt(0)")
        A("s_add_u32 s90, s18, 0x20000000\ns_addc_u32 s91, s19, 0")
        A("s_lshl_b32 s37, s2, 7\nv_mov_b32 v9, s37")
        A("v_mov_b32 v12, s70\nv_mov_b32 v13, s71\nv_mov_b32 v14, s72\nv_mov_b32 v15, s73\ns_mov_b64 exec, 1")
        A("global_store_dwordx4 v9, v[12:15], s[90:91] offset:96")
    A("s_endpgm")
    A("L_disp:")
    A("s_lshl_b32 s36, s21, 24")
    A(f"s_add_u32 s36, s36, {(3 << 22) + 1}")
    scat("s37", "s20", MB, 0, "s38", add="s36")
    A(f"v_mov_b32 v3, {DS0}")
    A("s_mov_b64 exec, 1")
    for k in range(NL):
        tile = 8 - NP - NL + k
        A(f"s_add_u32 s38, s37, {scat_c(tile, TB, 0)}")
        A("v_mov_b32 v8, s38")
        A(f"v_mov_b32 v9, {SW0 + 3*SWS + tile*512}")
        A(f"ds_write_b64 v3, v[8:9] offset:{8*k}")
    A("s_mov_b64 exec, -1")
    A("s_lshl_b32 s38, s22, 3")
    A(f"s_add_u32 s38, s38, {8*NL - 8}")
    A("v_add_u32 v3, s38, v3")
    A("v_and_b32 v14, 0x1ff, v2")
    A("v_bfe_u32 v8, v0, 3, 2")
    A("v_and_b32 v9, 7, v0")
    A("v_lshlrev_b32 v15, 7, v8")
    A("v_lshl_add_u32 v15, v9, 2, v15")
    A("s_lshl_b32 s39, s21, 16")
    A(f"s_add_u32 s39, s39, {WS_W + (8 - NP)*512}")
    A("s_lshl_b32 s44, s22, 2")
    A(f"s_add_u32 s44, s44, {4*(NL-1) + trig}")
    A("s_lshl_b32 s45, s22, 9")
    A("s_add_u32 s45, s45, 512")
    A("L_dl:")
    lds_wait(cQ, "s44", "v6", "v8", "s43", "s46", sleep=dslp)
    lds_wait(0, 1, "v3", "v8", "s43", "s46", sleep=dslp)
    A("s_cmp_eq_u32 s43, -1")
    A("s_cbranch_scc1 L_dexit")
    A("v_mov_b32 v8, 1")
    A("s_mov_b64 exec, 1")
    A("buffer_atomic_add v8, off, s[32:35], s68 sc0")
    A("s_mov_b64 exec, -1")
    A("s_waitcnt vmcnt(0)")
    A("v_readfirstlane_b32 s43, v8")
    A("s_nop 0")
    A(f"s_cmp_ge_u32 s43, {16*NP}")
    A("s_cbranch_scc1 L_dend")
    A("s_and_b32 s37, s43, 15")
    A("s_lshr_b32 s38, s43, 4")
    A("s_lshl_b32 s42, s37, 12")
    A("s_lshl_b32 s41, s38, 9")
    A("s_add_u32 s42, s42, s41")
    A("s_add_u32 s42, s42, s39")
    if not nowld: A(f"buffer_load_dwordx4 v[{G}:{G+3}], v14, s[32:35], s42 offen {ldpol}")
    A(f"s_add_u32 s38, s38, {8 - NP}")
    scat("s41", "s37", MB, 0, "s43", add="s36")
    scat("s37", "s38", TB, 0, "s43", add="s41")
    A("v_mov_b32 v8, s37")
    A("ds_write_b32 v3, v8 offset:8")
    A(f"s_mov_b32 s46, {0 if nowst else 0x8000}")
    A("L_dw:")
    A("s_waitcnt vmcnt(0)")
    check_tags(G, 8, 9, "vcc")
    A("s_cmp_eq_u64 vcc, 0")
    A("s_cbranch_scc1 L_dw_ok")
    A("s_sub_u32 s46, s46, 1")
    A("s_cbranch_scc1 L_dw_ok")
    A(f"s_sleep {gslp}")
    A(f"buffer_load_dwordx4 v[{G}:{G+3}], v14, s[32:35], s42 offen {ldpol}")
    A("s_branch L_dw")
    A("L_dw_ok:")
    A("v_add_u32 v9, s45, v15")
    for k in range(4):
        A(f"v_and_b32 v{G+k}, s57, v{G+k}")
        A(f"ds_write_b32 v9, v{G+k} offset:{32*k}")
    A("v_mov_b32 v8, s45")
    A("ds_write_b32 v3, v8 offset:12")
    A("v_add_u32 v3, 16, v3")
    A("s_add_u32 s44, s44, 8")
    A("s_add_u32 s45, s45, 1024")
    A("s_branch L_dl")
    A("L_dend:")
    A("v_mov_b32 v8, -1")
    A("ds_write_b32 v3, v8 offset:8")
    A("L_dexit:")
    A("s_cmp_lg_u32 s22, 0")
    A("s_cbranch_scc1 L_done")
    A("L_final:")
    A("v_lshrrev_b32 v8, 2, v0")
    A("v_and_b32 v9, 3, v0")
    A("v_lshlrev_b32 v15, 3, v9")
    A("v_lshlrev_b32 v9, 4, v9")
    A("v_lshl_add_u32 v3, v8, 11, v9")
    A("s_and_b32 s39, s22, 1")
    A("s_lshl_b32 s38, s20, 1")
    A("s_add_u32 s39, s39, s38")
    A("s_lshl_b32 s38, s39, 6")
    A("s_add_u32 s37, s61, s38")
    lds_wait(cS + 28, 4, "v6", "v8", "s43", "s46", sleep=oslp)
    A("s_mov_b64 s[62:63], -1")
    A("s_mov_b32 s46, 0x8000")
    A("L_fpoll:")
    A("s_mov_b64 exec, s[62:63]")
    A(f"buffer_load_dwordx4 v[{G}:{G+3}], v3, s[32:35], s37 offen {ldpol}")
    A("s_mov_b64 exec, -1")
    A("s_waitcnt vmcnt(0)")
    check_tags(G, 8, 9, "s[62:63]")
    A("s_nop 0")
    A("s_bcnt1_i32_b64 s43, s[62:63]")
    A("s_cbranch_scc0 L_fdone")
    A("s_sub_u32 s46, s46, 1")
    A("s_cbranch_scc1 L_fdone")
    A(f"s_cmp_le_u32 s43, {4*fastx}")
    A("s_cbranch_scc1 L_ffast")
    if fslp: A(f"s_sleep {fslp}")
    A("s_branch L_fpoll")
    A("L_ffast:")
    A("s_mov_b64 exec, s[62:63]")
    A(f"buffer_load_dwordx4 v[{G+8}:{G+11}], v3, s[32:35], s37 offen {ldpol}")
    A(f"s_sleep {fdelta}")
    A(f"buffer_load_dwordx4 v[{G+12}:{G+15}], v3, s[32:35], s37 offen {ldpol}")
    A("L_ff:")
    for j in range(2):
        r = G + 8 + 4*j
        A("s_mov_b64 exec, -1")
        A("s_waitcnt vmcnt(1)")
        check_tags(r, 8, 9, "vcc")
        A("s_andn2_b64 exec, s[62:63], vcc")
        for k in range(4): A(f"v_mov_b32 v{G+k}, v{r+k}")
        A("s_and_b64 s[62:63], s[62:63], vcc")
        A("s_cbranch_scc0 L_fdone")
        A("s_mov_b64 exec, s[62:63]")
        A(f"buffer_load_dwordx4 v[{r}:{r+3}], v3, s[32:35], s37 offen {ldpol}")
    A("s_sub_u32 s46, s46, 1")
    A("s_cbranch_scc0 L_ff")
    A("L_fdone:")
    A("s_mov_b64 exec, -1")
    if stamps >= 15: A("s_memrealtime s[86:87]")
    for k in range(4): A(f"v_and_b32 v{G+k}, s57, v{G+k}")
    for rot in (4, 8):
        A("s_nop 1")
        for k in range(4): A(f"v_add_f32_dpp v{G+k}, v{G+k}, v{G+k} row_ror:{rot} row_mask:0xf bank_mask:0xf")
    for sw in ("16", "32"):
        for k in range(4): A(f"v_mov_b32 v{G+4+k}, v{G+k}")
        A("s_nop 1")
        for k in range(4): A(f"v_permlane{sw}_swap_b32 v{G+k}, v{G+4+k}")
        for k in range(4): A(f"v_add_f32 v{G+k}, v{G+k}, v{G+4+k}")
    A(f"v_cvt_pk_bf16_f32 v{G}, v{G}, v{G+1}")
    A(f"v_cvt_pk_bf16_f32 v{G+1}, v{G+2}, v{G+3}")
    A("s_lshl_b32 s36, s21, 10")
    A("s_lshl_b32 s38, s39, 5")
    A("s_add_u32 s36, s36, s38")
    A("s_mov_b64 exec, 15")
    A(f"buffer_store_dwordx2 v[{G}:{G+1}], v15, s[52:55], s36 offen")
    A("s_cmp_lg_u32 s39, 0")
    A("s_cbranch_scc1 L_fend")
    A("v_mov_b32 v8, s56")
    A("s_mov_b64 exec, 1")
    A("buffer_store_dword v8, off, s[32:35], s47")
    A("L_fend:")
    if stamps > 3:
        A("s_mov_b64 exec, -1")
        A("s_cmp_lg_u32 s22, 3\ns_cbranch_scc1 L_done")
        A("s_waitcnt vmcnt(0)")
        stamp(3)
        stamp_store(range(3, min(stamps, 8)))
        if stamps >= 15:
            A("v_mov_b32 v10, s86\nv_mov_b32 v11, s87\ns_mov_b64 exec, 1")
            A("global_store_dwordx2 v9, v[10:11], s[90:91] offset:112")
    A("L_done:")
    A("s_endpgm")
    A(f""".section .rodata,"a"
.p2align 6
.amdhsa_kernel {KN}
  .amdhsa_next_free_vgpr 256
  .amdhsa_next_free_sgpr 100
  .amdhsa_accum_offset 256
  .amdhsa_group_segment_fixed_size 0
  .amdhsa_kernarg_size 64
  .amdhsa_user_sgpr_count 2
  .amdhsa_user_sgpr_kernarg_segment_ptr 1
  .amdhsa_system_sgpr_workgroup_id_x 1
  .amdhsa_float_denorm_mode_32 3
.end_amdhsa_kernel""")
    return "\n".join(L) + "\n"

if __name__ == "__main__":
    for spec in sys.argv[1:]:
        path, _, opts = spec.partition(":")
        kw = {}
        for p in filter(None, opts.split(",")):
            k, v = p.split("=")
            kw[k] = int(v) if v.lstrip("-").isdigit() else v
        open(path, "w").write(gen(**kw))
        print(path)
```

```python
import sys
KN = "standalone__low_rank_proj_linformer__decode_kernel"

HEADER = """; Kernarg layout for this problem (64 bytes, ptrs only, base s[0:1]):
"""

def gen(D=5, DV=None, stamps=0, epol="nt", fpol="nt", hthr=2, prio=1, slp=8, oslp=1, gslp=8, fslp=2,
        stpol="sc1", ldpol="sc1", kvpol="nt", qpol="", nosst=0, nosg=0, noo=0, noef=0, tlb=0, tlbat=2, fthr=None, tAR=22, tAO=25, tBR=36, tBO=40, npoll=4, NP=2, NL=2, dslp=1, trig=4, nowst=0, nowld=0, fastx=0, fdelta=8, noe=0, nof=0, etouch=0, ftouch=0, tb='15.16.17', mb='18.19.20.21', f4=0, e4=0, pf=0, pfpol='', pfw=1, dbgst=0):
    TB = [int(x) for x in str(tb).split('.')]; MB = [int(x) for x in str(mb).split('.')]
    assert sorted(TB + MB) == list(range(15, 22))
    fthr = fthr or hthr
    DV = DV or D
    L = []
    A = L.append
    ESTR = 2064
    SW0 = 64 * ESTR
    SWS = 4224
    PSTR = 2112
    OB0 = SW0 + 4 * SWS
    SC0 = OB0 + 8192
    PD0 = SC0 + 1024
    CN0 = PD0 + 2048
    DS0 = CN0 + 128
    NDESC = NL + 16*NP + 1
    LDS = DS0 + 640
    assert NDESC * 8 <= 640 and 1 <= NL and NP + NL <= 6
    cS, cE, cP, cW, cT, cQ = 0, 32, 48, 64, 80, 84
    WS_EP = 0
    WS_SC = 1 << 16
    WS_P = 1 << 19
    WS_C = 1 << 15
    WS_W = 2 << 20
    WS_O = 1 << 20
    lab = [0]
    def newlab(p):
        lab[0] += 1
        return f"L_{p}{lab[0]}"
    def lds_wait(off, target, vaddr, vt, st, sc, sleep=2):
        l = newlab("w"); d = newlab("wd")
        A(f"s_mov_b32 {sc}, 0x40000")
        A(f"{l}:")
        A(f"ds_read_b32 {vt}, {vaddr} offset:{off}")
        A("s_waitcnt lgkmcnt(0)")
        A(f"v_readfirstlane_b32 {st}, {vt}")
        A("s_nop 0")
        A(f"s_cmp_ge_u32 {st}, {target}")
        A(f"s_cbranch_scc1 {d}")
        A(f"s_sub_u32 {sc}, {sc}, 1")
        A(f"s_cbranch_scc1 {d}")
        A(f"s_sleep {sleep}")
        A(f"s_branch {l}")
        A(f"{d}:")
    def lds_inc(off, vaddr, vone):
        A("s_mov_b64 exec, 1")
        A(f"ds_add_u32 {vaddr}, {vone} offset:{off}")
        A("s_mov_b64 exec, -1")
    def scat(dst, src, bits, sh, tmp, add=None):
        runs = []
        for i, b in enumerate(bits):
            if runs and runs[-1][1] + runs[-1][2] == b and runs[-1][0] + runs[-1][2] == i: runs[-1][2] += 1
            else: runs.append([i, b, 1])
        cur = add
        for i, b, n in runs:
            t = tmp if cur is not None else dst
            if len(runs) == 1: A(f"s_lshl_b32 {t}, {src}, {b + sh}")
            else:
                A(f"s_bfe_u32 {t}, {src}, {(n << 16) | i}")
                A(f"s_lshl_b32 {t}, {t}, {b + sh}")
            if cur is not None: A(f"s_add_u32 {dst}, {cur}, {t}")
            cur = dst
    scat_c = lambda v, bits, sh: sum(((v >> i) & 1) << (b + sh) for i, b in enumerate(bits))
    def stamp(i):
        if stamps and i < stamps:
            A(f"s_memrealtime s[{70+2*i}:{71+2*i}]")
    def dbg_store(pairs):
        A("s_waitcnt lgkmcnt(0)")
        A("s_mov_b64 exec, 1")
        for w, sr, inv in pairs:
            A(f"s_and_b32 s43, {sr}, 0xffffff")
            if inv: A("s_xor_b32 s43, s43, 0xffffff")
            A("v_mov_b32 v10, s43")
            A(f"v_mov_b32 v9, {4*w}")
            A("global_atomic_umax v9, v10, s[16:17]")
            A("s_nop 1")
        A("s_mov_b64 exec, -1")
    def stamp_store(idx):
        A("s_waitcnt lgkmcnt(0)")
        A("s_add_u32 s90, s18, 0x20000000\ns_addc_u32 s91, s19, 0")
        A("s_lshl_b32 s37, s2, 7\nv_mov_b32 v9, s37")
        for i in idx:
            A(f"v_mov_b32 v10, s{70+2*i}\nv_mov_b32 v11, s{71+2*i}")
            A("s_mov_b64 exec, 1")
            A(f"global_store_dwordx2 v9, v[10:11], s[90:91] offset:{8*i}")
            A("s_mov_b64 exec, -1")
            A("s_nop 1")

    A(HEADER + f"; @launch grid=(256,1,1) block=(512,1,1) lds={LDS}")
    A('.amdgcn_target "amdgcn-amd-amdhsa--gfx950"')
    A(".text")
    A(f".globl {KN}\n.p2align 8\n.type {KN},@function\n{KN}:")
    A("s_cmp_ge_u32 s2, 256")
    A("s_cbranch_scc1 L_done")
    A("s_load_dwordx16 s[4:19], s[0:1], 0")
    stamp(0)
    A("v_lshrrev_b32 v1, 6, v0")
    A("v_and_b32 v0, 63, v0")
    A("v_readfirstlane_b32 s3, v1")
    A("s_and_b32 s20, s2, 15")
    A("s_lshr_b32 s21, s2, 4")
    A("v_lshrrev_b32 v4, 4, v0")
    A("v_and_b32 v5, 15, v0")
    A(f"v_mov_b32 v6, {CN0}")
    A("v_mov_b32 v7, 1")
    A("v_lshlrev_b32 v2, 4, v0")
    A("s_cmp_ge_u32 s3, 4")
    A("s_cbranch_scc1 L_helper")

    RING = 16; Q = 48; P = 64; X0, X1, Y, T = 72, 73, 74, 75
    M2 = 76; SA = 77; WA = 78; W = 79; ACC = 80; TM = 88; OA = 96; CA = 97; LP = 98; DA = 99; DV0 = 100
    A("v_add_u32 v3, 4096, v2")
    A("v_lshlrev_b32 v8, 4, v5")
    A("s_lshl_b32 s36, s21, 24")
    scat("s36", "s20", MB, 0, "s37", add="s36")
    A("s_lshl_b32 s37, s3, 13")
    A("s_add_u32 s36, s36, s37")
    A("s_lshl_b32 s39, s21, 10")
    A("s_waitcnt lgkmcnt(0)")
    A("s_mov_b32 s24, s6\ns_mov_b32 s25, s7\ns_mov_b32 s26, 0x10000000\ns_mov_b32 s27, 0x20000")
    A("s_mov_b32 s32, s4\ns_mov_b32 s33, s5\ns_mov_b32 s34, 16384\ns_mov_b32 s35, 0x20000")
    def kvload(idx, srd, soff):
        s = idx % 8
        A(f"buffer_load_dwordx4 v[{RING+4*s}:{RING+4*s+3}], v{2 + s//4}, s[{srd}:{srd+3}], {soff} offen offset:{(s%4)*1024} {kvpol}")
    for h in range(4):
        A(f"buffer_load_dwordx4 v[{Q+4*h}:{Q+4*h+3}], v8, s[32:35], s39 offen offset:{256*h} {qpol}")
    for u in range(D): kvload(u, 24, "s36")
    A("s_mov_b32 s28, s8\ns_mov_b32 s29, s9\ns_mov_b32 s30, 0x10000000\ns_mov_b32 s31, 0x20000")
    if prio: A(f"s_setprio {prio}")
    A("v_and_b32 v9, 1, v0")
    A("v_sub_u32 v10, 0, v9")
    A(f"v_and_b32 v{M2}, 0xffff0000, v10")
    A(f"v_mul_u32_u24 v{SA}, {PSTR}, v9")
    A("v_bfe_u32 v10, v0, 2, 2")
    A("v_lshlrev_b32 v10, 2, v10")
    A("v_add_u32 v10, v10, v4")
    A("s_lshl_b32 s37, s3, 5")
    A("v_add_u32 v10, s37, v10")
    A(f"v_lshl_add_u32 v{SA}, v10, 1, v{SA}")
    A(f"v_add_u32 v{SA}, {SW0}, v{SA}")
    A("v_and_b32 v10, 7, v0")
    A("v_lshlrev_b32 v10, 2, v10")
    A("v_add_u32 v10, v10, v4")
    A(f"v_lshlrev_b32 v{LP}, 2, v10")
    A("v_add_u32 v10, s37, v10")
    A(f"v_lshlrev_b32 v{WA}, 2, v10")
    A(f"v_add_u32 v{WA}, {SW0}, v{WA}")
    A("v_lshlrev_b32 v10, 5, v5")
    A("v_lshl_add_u32 v10, v4, 3, v10")
    A("s_lshl_b32 s37, s3, 9")
    A("v_add_u32 v10, s37, v10")
    A(f"v_add_u32 v{OA}, {OB0}, v10")
    for k in range(8): A(f"v_mov_b32 v{ACC+k}, 0")
    A(f"v_mov_b32 v{CA}, v6")
    A("s_cmp_eq_u32 s3, 0")
    A("s_cselect_b32 s48, 1, 0")
    A("s_mov_b32 s49, 0")
    A("s_mov_b32 s40, 0xffff0000")
    A("s_barrier")
    if dbgst: A(f"s_waitcnt vmcnt({D-1})\ns_memrealtime s[84:85]")
    A("s_mov_b32 s38, 0")
    A("s_mov_b32 s41, s36")

    def next_off():
        A("s_add_u32 s43, s38, 1")
        A("s_lshr_b32 s44, s43, 3")
        A("s_and_b32 s43, s43, 7")
        A("s_lshl_b32 s44, s44, 22")
        A("s_add_u32 s42, s36, s44")
        scat("s42", "s43", TB, 0, "s44", add="s42")
    def tick():
        l = newlab("nt")
        A("s_cmp_eq_u32 s48, 0")
        A(f"s_cbranch_scc1 {l}")
        lds_inc(cT, "v6", "v7")
        A(f"{l}:")
    def stage_done():
        lds_inc(cS, f"v{CA}", "v7")
        A(f"v_add_u32 v{CA}, 4, v{CA}")

    def kstep(cur_srd, nxt_srd, nxt_off, Din, Dout):
        issued = Din
        for u in range(8):
            A(f"s_waitcnt vmcnt({issued - u - 1})")
            want = u + 1 + (Din if u < 7 else Dout) if Din == Dout else u + 1 + Din + (Dout - Din) * (u + 1) // 8
            while issued < want:
                if issued < 8: kvload(issued, cur_srd, "s41")
                else: kvload(issued, nxt_srd, nxt_off)
                issued += 1
            r = RING + 4*u
            A(f"v_dot2_f32_bf16 v{P+u}, v{r}, v{Q}, 0")
            for m in range(1, 4):
                A(f"v_dot2_f32_bf16 v{P+u}, v{r+m}, v{Q+m}, v{P+u}")
            if u % 4 == 3:
                e = u // 4; p = P + 4*e
                A(f"v_add_f32_dpp v{X0}, v{p}, v{p} row_ror:8 row_mask:0xf bank_mask:0x3")
                A(f"v_add_f32_dpp v{X1}, v{p+1}, v{p+1} row_ror:8 row_mask:0xf bank_mask:0x3")
                A("s_nop 0")
                A(f"v_add_f32_dpp v{X0}, v{p+2}, v{p+2} row_ror:8 row_mask:0xf bank_mask:0xc")
                A(f"v_add_f32_dpp v{X1}, v{p+3}, v{p+3} row_ror:8 row_mask:0xf bank_mask:0xc")
                A(f"s_nop 0")
                A(f"v_add_f32_dpp v{Y}, v{X0}, v{X0} row_half_mirror row_mask:0xf bank_mask:0x5")
                A("s_nop 1")
                A(f"v_add_f32_dpp v{Y}, v{X1}, v{X1} row_half_mirror row_mask:0xf bank_mask:0xa")
                A("s_nop 1")
                A(f"v_add_f32_dpp v{Y}, v{Y}, v{Y} quad_perm:[1,0,3,2] row_mask:0xf bank_mask:0xf")
                A("s_nop 1")
                A(f"v_add_f32_dpp v{Y}, v{Y}, v{Y} quad_perm:[2,3,0,1] row_mask:0xf bank_mask:0xf")
                A(f"v_and_b32 v{T}, v{Y}, v{M2}")
                A(f"v_sub_f32 v{T}, v{Y}, v{T}")
                A(f"ds_write_b16_d16_hi v{SA}, v{T} offset:{32*e}")
        assert issued == 8 + Dout
        A(f"v_add_u32 v{SA}, 256, v{SA}")

    A("L_kloop:")
    next_off()
    kstep(24, 24, "s42", D, D)
    tick()
    A("s_mov_b32 s41, s42")
    A("s_add_u32 s38, s38, 1")
    A("s_and_b32 s43, s38, 7")
    A("s_cbranch_scc1 L_knohead")
    stage_done()
    A(f"v_add_u32 v{SA}, {SWS - 2048}, v{SA}")
    for k in range(12): A(f"v_mov_b32 v{Q+k}, v{Q+4+k}")
    A("L_knohead:")
    A("s_cmp_lt_u32 s38, 31")
    A("s_cbranch_scc1 L_kloop")
    kstep(24, 28, "s36", D, DV)
    tick()
    stage_done()
    stamp(1)
    def vproc(u):
        r = RING + 4*u
        for m in range(4):
            A(f"v_lshlrev_b32 v{TM+2*m}, 16, v{r+m}")
            A(f"v_and_b32 v{TM+2*m+1}, s40, v{r+m}")
        for k in range(8):
            A(f"v_fmac_f32_dpp v{ACC+k}, v{W}, v{TM+k} row_newbcast:{u} row_mask:0xf bank_mask:0xf")
    def vpart(u0, u1, drain=False, pull=False):
        for u in range(u0, u1):
            if drain:
                A(f"s_waitcnt vmcnt({7-u})")
            else:
                A(f"s_waitcnt vmcnt({DV-1})")
                if u + DV < 8: kvload(u + DV, 28, "s41")
                else: kvload(u + DV, 28, "s42")
            if u == 0: A("s_waitcnt lgkmcnt(0)")
            if pull and u == u1 - 1:
                A("s_mov_b64 exec, 1")
                A(f"ds_add_rtn_u32 v{DV0}, v6, v7 offset:{cQ}")
                A("s_mov_b64 exec, -1")
            vproc(u)
    def vstep():
        A(f"ds_read_b32 v{W}, v{WA}")
        vpart(0, 8)
        A(f"v_add_u32 v{WA}, 512, v{WA}")
    def vhead_end():
        A("s_nop 1")
        for k in range(4): A(f"v_permlane32_swap_b32 v{ACC+k}, v{ACC+k+4}")
        for k in range(4): A(f"v_add_f32 v{ACC+k}, v{ACC+k}, v{ACC+k+4}")
        A("s_nop 0")
        for k in range(2): A(f"v_permlane16_swap_b32 v{ACC+k}, v{ACC+k+2}")
        for k in range(2): A(f"v_add_f32 v{TM+k}, v{ACC+k}, v{ACC+k+2}")
        A(f"ds_write_b64 v{OA}, v[{TM}:{TM+1}]")
        stage_done()
    A("s_mov_b32 s38, 0")
    A("s_mov_b32 s41, s36")
    A("L_vhead:")
    lds_wait(cW - 16, 4, f"v{CA}", f"v{T}", "s43", "s46")
    A("L_vloop:")
    next_off()
    vstep()
    tick()
    A("s_mov_b32 s41, s42")
    A("s_add_u32 s38, s38, 1")
    A(f"s_cmp_eq_u32 s38, {31 - NP - NL}")
    A("s_cbranch_scc1 L_dyn")
    A("s_and_b32 s43, s38, 7")
    A("s_cbranch_scc1 L_vloop")
    vhead_end()
    for k in range(8): A(f"v_mov_b32 v{ACC+k}, 0")
    A(f"v_add_u32 v{WA}, {SWS - 4096}, v{WA}")
    A(f"v_add_u32 v{OA}, 2048, v{OA}")
    A("s_branch L_vhead")
    A("L_dyn:")
    A(f"ds_read_b32 v{W}, v{WA}")
    vpart(0, 8 - DV, pull=True)
    A("s_waitcnt lgkmcnt(0)")
    A(f"v_readfirstlane_b32 s43, v{DV0}")
    A("s_mov_b32 s46, 0x40000")
    A("s_and_b32 s45, s43, 3")
    A("s_lshr_b32 s43, s43, 2")
    A("s_lshl_b32 s43, s43, 3")
    A(f"s_add_u32 s43, s43, {DS0}")
    A(f"v_mov_b32 v{DA}, s43")
    A("L_dq:")
    A(f"ds_read_b32 v{DV0}, v{DA}")
    A("s_waitcnt lgkmcnt(0)")
    A(f"v_readfirstlane_b32 s43, v{DV0}")
    A("s_nop 0")
    A("s_cmp_lg_u32 s43, 0")
    A("s_cbranch_scc1 L_dq_ok")
    A("s_sub_u32 s46, s46, 1")
    A("s_cbranch_scc1 L_drain")
    A("s_sleep 1")
    A("s_branch L_dq")
    A("L_dq_ok:")
    A("s_cmp_eq_u32 s43, -1")
    A("s_cbranch_scc1 L_drain")
    A("s_lshl_b32 s44, s45, 13")
    A("s_add_u32 s42, s43, s44")
    A("s_sub_u32 s42, s42, 1")
    vpart(8 - DV, 8)
    lds_wait(4, 1, f"v{DA}", f"v{DV0}", "s43", "s46", sleep=1)
    A("s_lshl_b32 s45, s45, 7")
    A("s_add_u32 s43, s43, s45")
    A(f"v_add_u32 v{WA}, s43, v{LP}")
    A("s_mov_b32 s41, s42")
    A("s_branch L_dyn")
    A("L_drain:")
    vpart(8 - DV, 8, drain=True)
    vhead_end()
    if stamps:
        stamp(2)
        if stamps >= 12:
            A("s_waitcnt lgkmcnt(0)")
            A("s_add_u32 s90, s18, 0x20000000\ns_addc_u32 s91, s19, 0")
            A("s_lshl_b32 s37, s2, 7\ns_lshl_b32 s38, s3, 3\ns_add_u32 s37, s37, s38\nv_mov_b32 v9, s37")
            A("v_mov_b32 v10, s74\nv_mov_b32 v11, s75\ns_mov_b64 exec, 1")
            A("global_store_dwordx2 v9, v[10:11], s[90:91] offset:64\ns_mov_b64 exec, -1\ns_nop 1")
        A("s_cmp_lg_u32 s3, 0\ns_cbranch_scc1 L_done")
        if dbgst: dbg_store([(0, "s70", 1), (1, "s70", 0), (2, "s72", 1), (3, "s72", 0), (4, "s74", 1), (5, "s74", 0), (8, "s84", 1), (9, "s84", 0)])
        else: stamp_store(range(min(stamps, 3)))
    A("s_endpgm")

    F0 = 128
    EA, SB, PA, WW, M = 10, 11, 12, 13, 16
    TG = 20
    AC = 24
    BB = 40
    RA = 56
    PV = 88
    G = 56
    A("L_helper:")
    A("s_sub_u32 s22, s3, 4")
    A("v_mov_b32 v8, 0")
    A("v_lshl_add_u32 v9, v0, 2, v6")
    for i in range(3): A(f"ds_write_b32 v9, v8 offset:{256*i}")
    A("s_waitcnt lgkmcnt(0)")
    A("s_barrier")
    A("s_mov_b32 s32, s18\ns_mov_b32 s33, s19\ns_mov_b32 s34, 0x40000000\ns_mov_b32 s35, 0x20000")
    A("s_lshl_b32 s47, s21, 8")
    A(f"buffer_load_dword v{TG}, off, s[32:35], s47 sc1")
    A(f"s_add_u32 s68, s47, {WS_C}")
    A("s_or_b32 s43, s20, s22")
    A("s_cbranch_scc1 L_noinit")
    A("s_mov_b64 exec, 1")
    A("buffer_store_dword v8, off, s[32:35], s68 sc1")
    A("s_mov_b64 exec, -1")
    A("L_noinit:")
    A("s_mov_b32 s24, s10\ns_mov_b32 s25, s11\ns_mov_b32 s26, 0x200000\ns_mov_b32 s27, 0x20000")
    A("s_mov_b32 s28, s12\ns_mov_b32 s29, s13\ns_mov_b32 s30, 0x200000\ns_mov_b32 s31, 0x20000")
    A("s_mov_b32 s52, s14\ns_mov_b32 s53, s15\ns_mov_b32 s54, 16384\ns_mov_b32 s55, 0x20000")
    A("s_lshl_b32 s36, s22, 19")
    scat("s37", "s20", MB, -7, "s43")
    A("s_add_u32 s36, s36, s37")
    A("v_and_b32 v8, 1, v4")
    A(f"v_lshlrev_b32 v8, {TB[0]-7}, v8")
    A("v_lshrrev_b32 v9, 1, v4")
    A(f"v_lshlrev_b32 v9, {TB[1]-7}, v9")
    A("v_add_u32 v8, v8, v9")
    A("v_lshl_add_u32 v124, v5, 4, v8")
    A(f"v_add_u32 v125, {1 << (TB[2]-7)}, v124")
    A(f"s_mul_i32 s38, s22, {16*ESTR}")
    if tlb:
        A("s_mov_b32 s64, s6\ns_mov_b32 s65, s7\ns_mov_b32 s66, 0x10000000\ns_mov_b32 s67, 0x20000")
        A("s_mov_b32 s92, s8\ns_mov_b32 s93, s9\ns_mov_b32 s94, 0x10000000\ns_mov_b32 s95, 0x20000")
        A("s_lshl_b32 s44, s21, 24\ns_lshl_b32 s45, s20, 18\ns_add_u32 s44, s44, s45\ns_lshl_b32 s45, s22, 22\ns_add_u32 s44, s44, s45")
    XS = 8192 + 16
    if pf:
        A("s_lshl_b32 s43, s21, 2")
        A("s_add_u32 s43, s43, s22")
        A("s_lshl_b32 s43, s43, 15")
        A("s_add_u32 s43, s43, s37")
        for i, srd in enumerate((24, 28)):
            for hf in range(2):
                if (noe and i == 0) or (nof and i == 1): continue
                A(f"buffer_load_dwordx4 v[{F0+8*i+4*hf}:{F0+8*i+4*hf+3}], v{124+hf}, s[{srd}:{srd+3}], s43 offen {pfpol}")
        if pfw: A("s_waitcnt vmcnt(0)")
        if pfw > 1: A(f"s_sleep {pfw}")
    if e4:
        A("v_lshlrev_b32 v124, 15, v4")
        A("v_lshl_add_u32 v124, v5, 4, v124")
        A(f"s_mul_i32 s38, s22, {4*XS}")
        for x in range(4):
            for t in range(8):
                A(f"s_add_u32 s43, s36, {x*131072 + scat_c(t, TB, -7)}")
                A(f"s_add_u32 m0, s38, {x*XS + 1024*t}")
                A(f"s_waitcnt vmcnt({hthr-1})")
                if not (noef or noe): A(f"buffer_load_dwordx4 v124, s[24:27], s43 offen {epol} lds")
    for rr in range(0 if e4 else 16):
        for hf in range(2):
            A(f"s_add_u32 m0, s38, {rr*ESTR + 1024*hf}")
            A(f"s_waitcnt vmcnt({hthr-1})")
            if not (noef or noe): A(f"buffer_load_dwordx4 v{124+hf}, s[24:27], s36 offen {epol} lds")
        A("s_add_u32 s36, s36, 32768")
    A(f"v_lshlrev_b32 v3, {15 if f4 else 19}, v4")
    A("v_lshl_add_u32 v3, v5, 4, v3")
    A(f"v_add_u32 v126, {1 << (TB[0]-7)}, v3")
    scat("s36", "s22", TB[1:], -7, "s43", add="s37")
    for t in range(16):
        if ftouch and t % ftouch == 0:
            if t == 0:
                A("v_lshlrev_b32 v122, 15, v0")
                A("s_lshl_b32 s44, s22, 19")
                A("v_add_u32 v122, s44, v122")
            A(f"s_mov_b64 exec, {(1 << ftouch) - 1}")
            A("buffer_load_dword v123, v122, s[28:31], s36 offen nt")
            A("s_mov_b64 exec, -1")
        for tau in range(2):
            A(f"s_waitcnt vmcnt({fthr-1})")
            r = F0 + 64*tau + 4*t
            if not (noef or nof): A(f"buffer_load_dwordx4 v[{r}:{r+3}], v{126 if tau else 3}, s[28:31], s36 offen {fpol}")
        A(f"s_add_u32 s36, s36, {131072 if f4 else 32768}")
    if noef or nof: A("s_waitcnt vmcnt(0)")
    A(f"v_readfirstlane_b32 s56, v{TG}\ns_nop 0")
    A("s_add_u32 s56, s56, 0x01010101")
    for k in range(4):
        A(f"s_bfe_u32 s43, s56, {(8 << 16) | (8*k)}")
        A(f"v_mov_b32 v{TG+k}, s43")
    A("s_mov_b32 s57, 0xffffff00")
    A("s_mov_b32 s58, 0x0c0c0400")
    A("s_mov_b32 s59, 0x04000c0c")
    if e4:
        A(f"s_mul_i32 s36, s22, {4*XS}")
        A("v_lshrrev_b32 v8, 2, v5")
        A(f"v_mul_u32_u24 v{EA}, {XS}, v8")
        A("v_and_b32 v8, 3, v5")
        A(f"v_lshl_add_u32 v{EA}, v8, 8, v{EA}")
    else:
        A(f"s_mul_i32 s36, s22, {16*ESTR}")
        A(f"v_mul_u32_u24 v{EA}, {ESTR}, v5")
    A(f"v_lshl_add_u32 v{EA}, v4, 4, v{EA}")
    A(f"v_add_u32 v{EA}, s36, v{EA}")
    A("v_and_b32 v8, 1, v0")
    A(f"v_mul_u32_u24 v{SB}, {PSTR}, v8")
    A("v_bfe_u32 v8, v0, 1, 1")
    A(f"v_mul_u32_u24 v8, {SWS}, v8")
    A(f"v_add_u32 v{SB}, v{SB}, v8")
    A(f"v_lshl_add_u32 v{SB}, v4, 4, v{SB}")
    A(f"v_add_u32 v{SB}, {SW0}, v{SB}")
    A("v_bfe_u32 v8, v0, 3, 1")
    A(f"v_lshlrev_b32 v{PA}, 8, v8")
    A(f"v_lshl_add_u32 v{PA}, v4, 6, v{PA}")
    A(f"v_add_u32 v{PA}, {PD0}, v{PA}")
    A("v_and_b32 v8, 7, v0")
    A(f"v_lshlrev_b32 v{WW}, 2, v8")
    A(f"v_lshl_add_u32 v{WW}, v4, 7, v{WW}")
    A("s_lshl_b32 s36, s22, 10")
    A(f"v_add_u32 v{WW}, s36, v{WW}")
    A(f"v_add_u32 v{WW}, {SW0}, v{WW}")
    A("v_and_b32 v9, 1, v0")
    A("v_lshlrev_b32 v9, 4, v9")
    A("v_mov_b32 v14, 0xffff")
    A("v_lshlrev_b32 v9, v9, v14")
    A("v_bfe_u32 v8, v0, 1, 2")
    for m in range(4):
        A(f"v_cmp_eq_u32 vcc, {m}, v8")
        A("s_nop 1")
        A(f"v_cndmask_b32 v{M+m}, 0, v9, vcc")
    A("s_lshl_b32 s60, s21, 14")
    A(f"s_add_u32 s60, s60, {WS_SC}")
    A("s_lshl_b32 s61, s21, 15")
    A(f"s_add_u32 s61, s61, {WS_O}")
    if stamps > 4: stamp(4)

    def put_tags(r):
        for k in range(4): A(f"v_and_or_b32 v{r+k}, v{r+k}, s57, v{TG+k}")
    def check_tags(r, t0, t1, dst):
        A(f"v_perm_b32 v{t0}, v{r+1}, v{r}, s58")
        A(f"v_perm_b32 v{t1}, v{r+3}, v{r+2}, s59")
        A(f"v_or_b32 v{t0}, v{t0}, v{t1}")
        A(f"v_cmp_ne_u32 {dst}, s56, v{t0}")

    def epass(a):
        lds_wait(cS + 8*a, 4, "v6", "v8", "s43", "s46", sleep=slp)
        lds_wait(cS + 8*a + 4, 4, "v6", "v8", "s43", "s46", sleep=slp)
        for k in range(4): A(f"v_mov_b32 v{AC+k}, 0")
        for ch in range(8):
            for kk in range(4):
                A(f"ds_read_b128 v[{RA+8*kk}:{RA+8*kk+3}], v{EA} offset:{ch*1024 + kk*64 if e4 else (4*ch+kk)*64}")
                A(f"ds_read_b128 v[{RA+8*kk+4}:{RA+8*kk+7}], v{SB} offset:{2*a*SWS + (4*ch+kk)*64}")
            for kk in range(4):
                A(f"s_waitcnt lgkmcnt({6-2*kk})")
                A(f"v_mfma_f32_16x16x32_bf16 v[{AC}:{AC+3}], v[{RA+8*kk}:{RA+8*kk+3}], v[{RA+8*kk+4}:{RA+8*kk+7}], v[{AC}:{AC+3}]")
        A("s_lshl_b32 s36, s22, 6")
        A("v_bfe_u32 v9, v0, 1, 1")
        A("v_lshlrev_b32 v8, 4, v4")
        A("v_lshl_add_u32 v8, v9, 8, v8")
        A("v_add_u32 v8, s36, v8")
        A(f"v_add_u32 v8, {SC0 + 512*a}, v8")
        A("s_nop 4")
        for k in range(4):
            A(f"v_add_f32_dpp v{AC+4+k}, v{AC+k}, v{AC+k} quad_perm:[1,0,3,2] row_mask:0xf bank_mask:0xf")
        A(f"ds_write_b128 v8, v[{AC+4}:{AC+7}]")
        A("s_mov_b64 exec, 1")
        A(f"ds_add_rtn_u32 v8, v6, v7 offset:{cE + 4*a}")
        A("s_mov_b64 exec, -1")
        A("s_waitcnt lgkmcnt(0)")
        A("v_readfirstlane_b32 s43, v8")
        sk = newlab("nopub")
        A("s_nop 0")
        A(f"s_cmp_lg_u32 s43, 3")
        A(f"s_cbranch_scc1 {sk}")
        A(f"v_add_u32 v9, {SC0 + 512*a}, v2")
        A("s_mov_b32 exec_hi, 0")
        A(f"ds_read_b128 v[{G}:{G+3}], v9")
        A("s_lshl_b32 s38, s20, 9")
        A("s_add_u32 s37, s60, s38")
        A(f"s_add_u32 s37, s37, {8192*a}")
        A("s_waitcnt lgkmcnt(0)")
        put_tags(G)
        if not nosst: A(f"buffer_store_dwordx4 v[{G}:{G+3}], v2, s[32:35], s37 offen {stpol}")
        A("s_mov_b64 exec, -1")
        A("s_nop 1")
        A(f"{sk}:")

    def pw(a):
        sk = newlab("nop"); oth = newlab("oth"); com = newlab("com")
        A(f"s_cmp_lg_u32 s22, 0")
        A(f"s_cbranch_scc1 {sk}")
        A("s_lshl_b32 s39, s21, 10")
        A(f"s_add_u32 s39, s39, {WS_P + 512*a}")
        A(f"s_add_u32 s43, s21, {8*a}")
        A("s_and_b32 s43, s43, 15")
        A("s_cmp_lg_u32 s43, s20")
        A(f"s_cbranch_scc1 {oth}")
        lds_wait(cT, (tAR, tBR)[a], "v6", "v8", "s43", "s46", sleep=slp)
        A(f"s_add_u32 s37, s60, {8192*a}")
        A("s_add_u32 s38, s37, 4096")
        l = newlab("gp"); d = newlab("gpd")
        A(f"s_mov_b32 s46, {0 if nosst else 0x8000}")
        if nosg: A(f"s_branch {d}")
        A(f"{l}:")
        for i in range(8):
            A(f"buffer_load_dwordx4 v[{G+4*i}:{G+4*i+3}], v2, s[32:35], {'s37' if i < 4 else 's38'} offen offset:{1024*(i%4)} {ldpol}")
        A("s_mov_b64 s[62:63], 0")
        for i in range(8):
            A(f"s_waitcnt vmcnt({7-i})")
            check_tags(G+4*i, 8, 9, "vcc")
            A("s_or_b64 s[62:63], s[62:63], vcc")
        A("s_cmp_eq_u64 s[62:63], 0")
        A(f"s_cbranch_scc1 {d}")
        A("s_sub_u32 s46, s46, 1")
        A(f"s_cbranch_scc1 {d}")
        A(f"s_sleep {gslp}")
        A(f"s_branch {l}")
        A(f"{d}:")
        for k in range(32): A(f"v_and_b32 v{G+k}, s57, v{G+k}")
        for st in (16, 8, 4):
            for k in range(st): A(f"v_add_f32 v{G+k}, v{G+k}, v{G+st+k}")
        for k in range(4): A(f"v_mov_b32 v{G+4+k}, v{G+k}")
        A("s_nop 1")
        for k in range(4): A(f"v_permlane32_swap_b32 v{G+k}, v{G+4+k}")
        for k in range(4): A(f"v_add_f32 v{G+k}, v{G+k}, v{G+4+k}")
        A(f"v_max_f32 v{G+4}, v{G}, v{G+1}")
        A(f"v_max3_f32 v{G+4}, v{G+4}, v{G+2}, v{G+3}")
        for rot in (8, 4, 2, 1):
            A("s_nop 1")
            A(f"v_max_f32_dpp v{G+4}, v{G+4}, v{G+4} row_ror:{rot} row_mask:0xf bank_mask:0xf")
        A("s_mov_b32 s36, 0x3e0293ee")
        for k in range(4):
            A(f"v_sub_f32 v{G+k}, v{G+k}, v{G+4}")
            A(f"v_mul_f32 v{G+k}, s36, v{G+k}")
            A(f"v_exp_f32 v{G+k}, v{G+k}")
        A("s_nop 0")
        A(f"v_add_f32 v{G+4}, v{G}, v{G+1}")
        A(f"v_add_f32 v{G+5}, v{G+2}, v{G+3}")
        A(f"v_add_f32 v{G+4}, v{G+4}, v{G+5}")
        for rot in (8, 4, 2, 1):
            A("s_nop 1")
            A(f"v_add_f32_dpp v{G+4}, v{G+4}, v{G+4} row_ror:{rot} row_mask:0xf bank_mask:0xf")
        A(f"v_rcp_f32 v{G+4}, v{G+4}")
        A("s_nop 0")
        for k in range(4): A(f"v_mul_f32 v{G+k}, v{G+k}, v{G+4}")
        put_tags(G)
        A("s_mov_b32 exec_hi, 0")
        A(f"buffer_store_dwordx4 v[{G}:{G+3}], v2, s[32:35], s39 offen {stpol}")
        A("s_mov_b64 exec, -1")
        A(f"s_branch {com}")
        A(f"{oth}:")
        lds_wait(cT, (tAO, tBO)[a], "v6", "v8", "s43", "s46", sleep=slp)
        A("v_and_b32 v3, 0x1ff, v2")
        l = newlab("pp")
        A(f"s_mov_b32 s46, {0 if nosst else 0x8000}")
        A(f"{l}:")
        A(f"buffer_load_dwordx4 v[{G}:{G+3}], v3, s[32:35], s39 offen {ldpol}")
        A("s_waitcnt vmcnt(0)")
        check_tags(G, 8, 9, "vcc")
        A("s_cmp_eq_u64 vcc, 0")
        A(f"s_cbranch_scc1 {com}")
        A("s_sub_u32 s46, s46, 1")
        A(f"s_cbranch_scc1 {com}")
        A(f"s_sleep {gslp}")
        A(f"s_branch {l}")
        A(f"{com}:")
        A("v_lshrrev_b32 v8, 5, v0")
        A("v_sub_u32 v9, 0, v8")
        A("v_and_b32 v9, 0xffff0000, v9")
        A("v_mov_b32 v14, 0x03020302")
        for k in range(4):
            A(f"v_and_b32 v{G+4+k}, s57, v{G+k}")
            A(f"v_and_b32 v{G+8}, v{G+4+k}, v9")
            A(f"v_sub_f32 v{G+4+k}, v{G+4+k}, v{G+8}")
            A(f"v_perm_b32 v{G+4+k}, v{G+4+k}, v{G+4+k}, v14")
        A("v_lshlrev_b32 v8, 8, v8")
        A(f"v_lshl_add_u32 v8, v5, {2 if f4 else 4}, v8")
        A("v_and_b32 v9, 1, v4")
        A("v_lshl_add_u32 v8, v9, 9, v8")
        A(f"v_add_u32 v8, {PD0 + 1024*a}, v8")
        if f4:
            for k in range(4): A(f"ds_write_b32 v8, v{G+4+k} offset:{64*k}")
        else:
            A(f"ds_write_b128 v8, v[{G+4}:{G+7}]")
        lds_inc(cP + 4*a, "v6", "v7")
        A(f"{sk}:")
        lds_wait(cP + 4*a, 1, "v6", "v8", "s43", "s46", sleep=slp)
        for hb in range(2):
            for i in range(4):
                A(f"ds_read_b128 v[{PV+16*hb+4*i}:{PV+16*hb+4*i+3}], v{PA} offset:{1024*a + 512*hb + 16*i}")
        for k in range(16): A(f"v_mov_b32 v{AC+k}, 0")
        A("s_waitcnt vmcnt(0) lgkmcnt(0)")
        for t in range(16):
            b = BB + 8*(t % 2)
            for hb in range(2):
                for m in range(4): A(f"v_and_b32 v{b+4*hb+m}, v{PV+16*hb+t}, v{M+m}")
            A("s_nop 0")
            for hb in range(2):
                for tau in range(2):
                    r = F0 + 64*tau + 4*t
                    ac = AC + 8*hb + 4*tau
                    if hb == 1 and tau == 0 and False: A("s_nop 0")
                    A(f"v_mfma_f32_16x16x32_bf16 v[{ac}:{ac+3}], v[{r}:{r+3}], v[{b+4*hb}:{b+4*hb+3}], v[{ac}:{ac+3}]")
        A("s_nop 7\ns_nop 1")
        for k in range(16):
            A(f"v_add_f32_dpp v{RA+k}, v{AC+k}, v{AC+k} row_ror:8 row_mask:0xf bank_mask:0xf")
        for k in range(16):
            hb, tau, rr = k // 8, (k // 4) % 2, k % 4
            A(f"ds_write_b32 v{WW}, v{RA+k} offset:{(2*a+hb)*SWS + tau*512 + rr*32}")
        if a == 1:
            sk2 = newlab("now")
            A(f"s_cmp_lt_u32 s22, {(8 - NP) // 2}")
            A(f"s_cbranch_scc1 {sk2}")
            A("v_and_b32 v8, 8, v0")
            A("v_cmp_ne_u32 vcc, 0, v8")
            A("v_lshlrev_b32 v8, 6, v8")
            A("v_and_b32 v9, 7, v0")
            A("v_lshl_add_u32 v8, v9, 4, v8")
            A("v_lshl_add_u32 v8, v4, 7, v8")
            for k in range(4): A(f"v_cndmask_b32 v{AC+k}, v{RA+8+k}, v{RA+12+k}, vcc")
            put_tags(AC)
            A("s_lshl_b32 s36, s21, 16")
            A("s_lshl_b32 s37, s20, 12")
            A("s_add_u32 s36, s36, s37")
            A("s_lshl_b32 s37, s22, 10")
            A("s_add_u32 s36, s36, s37")
            A(f"s_add_u32 s36, s36, {WS_W}")
            if NP % 2:
                A(f"s_cmp_eq_u32 s22, {(8 - NP) // 2}")
                A("s_cselect_b64 exec, vcc, -1")
            if not nowst: A(f"buffer_store_dwordx4 v[{AC}:{AC+3}], v8, s[32:35], s36 offen {stpol}")
            A("s_mov_b64 exec, -1")
            A(f"{sk2}:")
        A("s_mov_b64 exec, 1")
        A(f"ds_add_u32 v6, v7 offset:{cW + 8*a}")
        A(f"ds_add_u32 v6, v7 offset:{cW + 8*a + 4}")
        A("s_mov_b64 exec, -1")

    epass(0)
    if stamps > 5: stamp(5)
    pw(0)
    if stamps > 6: stamp(6)
    epass(1)
    pw(1)
    if stamps > 7: stamp(7)
    if noo: A("s_endpgm")
    A("s_cmp_eq_u32 s22, 3")
    A("s_cbranch_scc1 L_final")
    A("s_cmp_lt_u32 s22, 2")
    A("s_cbranch_scc1 L_disp")
    A("v_lshrrev_b32 v8, 5, v0")
    A("v_and_b32 v9, 31, v0")
    A("v_lshlrev_b32 v9, 4, v9")
    A("v_lshl_add_u32 v9, v8, 11, v9")
    A(f"v_add_u32 v15, {OB0}, v9")
    A("s_lshl_b32 s38, s20, 11")
    A("s_add_u32 s37, s61, s38")
    for a in range(2):
        lds_wait(cS + 16 + 8*a, 4, "v6", "v8", "s43", "s46", sleep=slp)
        lds_wait(cS + 16 + 8*a + 4, 4, "v6", "v8", "s43", "s46", sleep=(oslp if a else slp))
        r = G + 16*a
        for w in range(4): A(f"ds_read_b128 v[{r+4*w}:{r+4*w+3}], v15 offset:{4096*a + 512*w}")
        if a == 1:
            A(f"buffer_store_dwordx4 v[{G}:{G+3}], v2, s[32:35], s37 offen {stpol}")
        A("s_waitcnt lgkmcnt(0)")
        for k in range(4):
            A(f"v_add_f32 v{r+k}, v{r+k}, v{r+4+k}")
            A(f"v_add_f32 v{r+8+k}, v{r+8+k}, v{r+12+k}")
        for k in range(4): A(f"v_add_f32 v{r+k}, v{r+k}, v{r+8+k}")
        put_tags(r)
    A(f"buffer_store_dwordx4 v[{G+16}:{G+19}], v2, s[32:35], s37 offen offset:1024 {stpol}")
    if stamps >= 15:
        A("s_memrealtime s[70:71]\ns_waitcnt vmcnt(0)\ns_memrealtime s[72:73]\ns_waitcnt lgkmcnt(0)")
        A("s_add_u32 s90, s18, 0x20000000\ns_addc_u32 s91, s19, 0")
        A("s_lshl_b32 s37, s2, 7\nv_mov_b32 v9, s37")
        A("v_mov_b32 v12, s70\nv_mov_b32 v13, s71\nv_mov_b32 v14, s72\nv_mov_b32 v15, s73\ns_mov_b64 exec, 1")
        A("global_store_dwordx4 v9, v[12:15], s[90:91] offset:96")
    A("s_endpgm")
    A("L_disp:")
    A("s_lshl_b32 s36, s21, 24")
    A(f"s_add_u32 s36, s36, {(3 << 22) + 1}")
    scat("s37", "s20", MB, 0, "s38", add="s36")
    A(f"v_mov_b32 v3, {DS0}")
    A("s_mov_b64 exec, 1")
    for k in range(NL):
        tile = 8 - NP - NL + k
        A(f"s_add_u32 s38, s37, {scat_c(tile, TB, 0)}")
        A("v_mov_b32 v8, s38")
        A(f"v_mov_b32 v9, {SW0 + 3*SWS + tile*512}")
        A(f"ds_write_b64 v3, v[8:9] offset:{8*k}")
    A("s_mov_b64 exec, -1")
    A("s_lshl_b32 s38, s22, 3")
    A(f"s_add_u32 s38, s38, {8*NL - 8}")
    A("v_add_u32 v3, s38, v3")
    A("v_and_b32 v14, 0x1ff, v2")
    A("v_bfe_u32 v8, v0, 3, 2")
    A("v_and_b32 v9, 7, v0")
    A("v_lshlrev_b32 v15, 7, v8")
    A("v_lshl_add_u32 v15, v9, 2, v15")
    A("s_lshl_b32 s39, s21, 16")
    A(f"s_add_u32 s39, s39, {WS_W + (8 - NP)*512}")
    A("s_lshl_b32 s44, s22, 2")
    A(f"s_add_u32 s44, s44, {4*(NL-1) + trig}")
    A("s_lshl_b32 s45, s22, 9")
    A("s_add_u32 s45, s45, 512")
    A("L_dl:")
    lds_wait(cQ, "s44", "v6", "v8", "s43", "s46", sleep=dslp)
    lds_wait(0, 1, "v3", "v8", "s43", "s46", sleep=dslp)
    A("s_cmp_eq_u32 s43, -1")
    A("s_cbranch_scc1 L_dexit")
    A("v_mov_b32 v8, 1")
    A("s_mov_b64 exec, 1")
    A("buffer_atomic_add v8, off, s[32:35], s68 sc0")
    A("s_mov_b64 exec, -1")
    A("s_waitcnt vmcnt(0)")
    A("v_readfirstlane_b32 s43, v8")
    A("s_nop 0")
    A(f"s_cmp_ge_u32 s43, {16*NP}")
    A("s_cbranch_scc1 L_dend")
    A("s_and_b32 s37, s43, 15")
    A("s_lshr_b32 s38, s43, 4")
    A("s_lshl_b32 s42, s37, 12")
    A("s_lshl_b32 s41, s38, 9")
    A("s_add_u32 s42, s42, s41")
    A("s_add_u32 s42, s42, s39")
    if not nowld: A(f"buffer_load_dwordx4 v[{G}:{G+3}], v14, s[32:35], s42 offen {ldpol}")
    A(f"s_add_u32 s38, s38, {8 - NP}")
    scat("s41", "s37", MB, 0, "s43", add="s36")
    scat("s37", "s38", TB, 0, "s43", add="s41")
    A("v_mov_b32 v8, s37")
    A("ds_write_b32 v3, v8 offset:8")
    A(f"s_mov_b32 s46, {0 if nowst else 0x8000}")
    A("L_dw:")
    A("s_waitcnt vmcnt(0)")
    check_tags(G, 8, 9, "vcc")
    A("s_cmp_eq_u64 vcc, 0")
    A("s_cbranch_scc1 L_dw_ok")
    A("s_sub_u32 s46, s46, 1")
    A("s_cbranch_scc1 L_dw_ok")
    A(f"s_sleep {gslp}")
    A(f"buffer_load_dwordx4 v[{G}:{G+3}], v14, s[32:35], s42 offen {ldpol}")
    A("s_branch L_dw")
    A("L_dw_ok:")
    A("v_add_u32 v9, s45, v15")
    for k in range(4):
        A(f"v_and_b32 v{G+k}, s57, v{G+k}")
        A(f"ds_write_b32 v9, v{G+k} offset:{32*k}")
    A("v_mov_b32 v8, s45")
    A("ds_write_b32 v3, v8 offset:12")
    A("v_add_u32 v3, 16, v3")
    A("s_add_u32 s44, s44, 8")
    A("s_add_u32 s45, s45, 1024")
    A("s_branch L_dl")
    A("L_dend:")
    A("v_mov_b32 v8, -1")
    A("ds_write_b32 v3, v8 offset:8")
    A("L_dexit:")
    A("s_cmp_lg_u32 s22, 0")
    A("s_cbranch_scc1 L_done")
    A("L_final:")
    A("v_lshrrev_b32 v8, 2, v0")
    A("v_and_b32 v9, 3, v0")
    A("v_lshlrev_b32 v15, 3, v9")
    A("v_lshlrev_b32 v9, 4, v9")
    A("v_lshl_add_u32 v3, v8, 11, v9")
    A("s_and_b32 s39, s22, 1")
    A("s_lshl_b32 s38, s20, 1")
    A("s_add_u32 s39, s39, s38")
    A("s_lshl_b32 s38, s39, 6")
    A("s_add_u32 s37, s61, s38")
    lds_wait(cS + 28, 4, "v6", "v8", "s43", "s46", sleep=oslp)
    A("s_mov_b64 s[62:63], -1")
    A("s_mov_b32 s46, 0x8000")
    A("L_fpoll:")
    A("s_mov_b64 exec, s[62:63]")
    A(f"buffer_load_dwordx4 v[{G}:{G+3}], v3, s[32:35], s37 offen {ldpol}")
    A("s_mov_b64 exec, -1")
    A("s_waitcnt vmcnt(0)")
    check_tags(G, 8, 9, "s[62:63]")
    A("s_nop 0")
    A("s_bcnt1_i32_b64 s43, s[62:63]")
    A("s_cbranch_scc0 L_fdone")
    A("s_sub_u32 s46, s46, 1")
    A("s_cbranch_scc1 L_fdone")
    A(f"s_cmp_le_u32 s43, {4*fastx}")
    A("s_cbranch_scc1 L_ffast")
    if fslp: A(f"s_sleep {fslp}")
    A("s_branch L_fpoll")
    A("L_ffast:")
    A("s_mov_b64 exec, s[62:63]")
    A(f"buffer_load_dwordx4 v[{G+8}:{G+11}], v3, s[32:35], s37 offen {ldpol}")
    A(f"s_sleep {fdelta}")
    A(f"buffer_load_dwordx4 v[{G+12}:{G+15}], v3, s[32:35], s37 offen {ldpol}")
    A("L_ff:")
    for j in range(2):
        r = G + 8 + 4*j
        A("s_mov_b64 exec, -1")
        A("s_waitcnt vmcnt(1)")
        check_tags(r, 8, 9, "vcc")
        A("s_andn2_b64 exec, s[62:63], vcc")
        for k in range(4): A(f"v_mov_b32 v{G+k}, v{r+k}")
        A("s_and_b64 s[62:63], s[62:63], vcc")
        A("s_cbranch_scc0 L_fdone")
        A("s_mov_b64 exec, s[62:63]")
        A(f"buffer_load_dwordx4 v[{r}:{r+3}], v3, s[32:35], s37 offen {ldpol}")
    A("s_sub_u32 s46, s46, 1")
    A("s_cbranch_scc0 L_ff")
    A("L_fdone:")
    A("s_mov_b64 exec, -1")
    if stamps >= 15: A("s_memrealtime s[86:87]")
    for k in range(4): A(f"v_and_b32 v{G+k}, s57, v{G+k}")
    for rot in (4, 8):
        A("s_nop 1")
        for k in range(4): A(f"v_add_f32_dpp v{G+k}, v{G+k}, v{G+k} row_ror:{rot} row_mask:0xf bank_mask:0xf")
    for sw in ("16", "32"):
        for k in range(4): A(f"v_mov_b32 v{G+4+k}, v{G+k}")
        A("s_nop 1")
        for k in range(4): A(f"v_permlane{sw}_swap_b32 v{G+k}, v{G+4+k}")
        for k in range(4): A(f"v_add_f32 v{G+k}, v{G+k}, v{G+4+k}")
    A(f"v_cvt_pk_bf16_f32 v{G}, v{G}, v{G+1}")
    A(f"v_cvt_pk_bf16_f32 v{G+1}, v{G+2}, v{G+3}")
    A("s_lshl_b32 s36, s21, 10")
    A("s_lshl_b32 s38, s39, 5")
    A("s_add_u32 s36, s36, s38")
    A("s_mov_b64 exec, 15")
    A(f"buffer_store_dwordx2 v[{G}:{G+1}], v15, s[52:55], s36 offen")
    A("s_cmp_lg_u32 s39, 0")
    A("s_cbranch_scc1 L_fend")
    A("v_mov_b32 v8, s56")
    A("s_mov_b64 exec, 1")
    A("buffer_store_dword v8, off, s[32:35], s47")
    A("L_fend:")
    if stamps > 3:
        A("s_mov_b64 exec, -1")
        A("s_cmp_lg_u32 s22, 3\ns_cbranch_scc1 L_done")
        A("s_waitcnt vmcnt(0)")
        stamp(3)
        if dbgst:
            dbg_store([(6, "s76", 1), (7, "s76", 0)])
            A("s_endpgm")
        stamp_store(range(3, min(stamps, 8)))
        if stamps >= 15:
            A("v_mov_b32 v10, s86\nv_mov_b32 v11, s87\ns_mov_b64 exec, 1")
            A("global_store_dwordx2 v9, v[10:11], s[90:91] offset:112")
    A("L_done:")
    A("s_endpgm")
    A(f""".section .rodata,"a"
.p2align 6
.amdhsa_kernel {KN}
  .amdhsa_next_free_vgpr 256
  .amdhsa_next_free_sgpr 100
  .amdhsa_accum_offset 256
  .amdhsa_group_segment_fixed_size 0
  .amdhsa_kernarg_size 64
  .amdhsa_user_sgpr_count 2
  .amdhsa_user_sgpr_kernarg_segment_ptr 1
  .amdhsa_system_sgpr_workgroup_id_x 1
  .amdhsa_float_denorm_mode_32 3
.end_amdhsa_kernel""")
    return "\n".join(L) + "\n"

if __name__ == "__main__":
    for spec in sys.argv[1:]:
        path, _, opts = spec.partition(":")
        kw = {}
        for p in filter(None, opts.split(",")):
            k, v = p.split("=")
            kw[k] = int(v) if v.lstrip("-").isdigit() else v
        open(path, "w").write(gen(**kw))
        print(path)
```

```python
import sys
KN = "standalone__low_rank_proj_linformer__decode_kernel"

HEADER = """; Kernarg layout for this problem (64 bytes, ptrs only, base s[0:1]):
"""

DOC = """
; ---------------------------------------------------------------------------------------------
; ---------------------------------------------------------------------------------------------"""

def gen(D=5, DV=6, stamps=0, epol="nt", fpol="nt", hthr=2, prio=0, slp=16, oslp=1, gslp=8, fslp=0,
        stpol="sc1", ldpol="sc1", kvpol="nt", qpol="", nosst=0, nosg=0, noo=0, noef=0, tlb=0, tlbat=2, fthr=None, tAR=24, tAO=27, tBR=36, tBO=40, npoll=4, NP=3, NL=2, dslp=1, trig=4, nowst=0, nowld=0, fastx=16, fdelta=8, noe=0, nof=0, etouch=0, ftouch=0, tb='15.19.20', mb='16.17.18.21', f4=1, e4=0, pf=1, pfpol='', pfw=1, dbgst=0, hold=0, opol='', eppol='', wsoff=0, hx=3, hxs=0, eo=3, wlate=0, nopst=0, nopld=0, sstpol=None, gc=0, pfsplit=0, ealt=0, falt=0, stg=0, sat=0):
    sstpol = stpol if sstpol is None else sstpol
    TB = [int(x) for x in str(tb).split('.')]; MB = [int(x) for x in str(mb).split('.')]
    assert sorted(TB + MB) == list(range(15, 22))
    fthr = fthr or hthr
    DV = DV or D
    L = []
    A = L.append
    ESTR = 2064
    SW0 = 64 * ESTR
    SWS = 4224
    PSTR = 2112
    OB0 = SW0 + 4 * SWS
    SC0 = OB0 + 8192
    PD0 = SC0 + 1024
    CN0 = PD0 + 2048
    DS0 = CN0 + 128
    NDESC = NL + 16*NP + 1
    LDS = DS0 + 896
    assert NDESC * 8 <= 896 and 1 <= NL and NP + NL <= 6
    cS, cE, cP, cW, cT, cQ = 0, 32, 48, 64, 80, 84
    WS_EP = 0
    WS_SC = 1 << 16
    WS_P = 1 << 19
    WS_C = 1 << 15
    WS_W = 2 << 20
    WS_O = 1 << 20
    lab = [0]
    def newlab(p):
        lab[0] += 1
        return f"L_{p}{lab[0]}"
    def lds_wait(off, target, vaddr, vt, st, sc, sleep=2):
        l = newlab("w"); d = newlab("wd")
        A(f"s_mov_b32 {sc}, 0x40000")
        A(f"{l}:")
        A(f"ds_read_b32 {vt}, {vaddr} offset:{off}")
        A("s_waitcnt lgkmcnt(0)")
        A(f"v_readfirstlane_b32 {st}, {vt}")
        A("s_nop 0")
        A(f"s_cmp_ge_u32 {st}, {target}")
        A(f"s_cbranch_scc1 {d}")
        A(f"s_sub_u32 {sc}, {sc}, 1")
        A(f"s_cbranch_scc1 {d}")
        A(f"s_sleep {sleep}")
        A(f"s_branch {l}")
        A(f"{d}:")
    def lds_inc(off, vaddr, vone):
        A("s_mov_b64 exec, 1")
        A(f"ds_add_u32 {vaddr}, {vone} offset:{off}")
        A("s_mov_b64 exec, -1")
    def scat(dst, src, bits, sh, tmp, add=None):
        runs = []
        for i, b in enumerate(bits):
            if runs and runs[-1][1] + runs[-1][2] == b and runs[-1][0] + runs[-1][2] == i: runs[-1][2] += 1
            else: runs.append([i, b, 1])
        cur = add
        for i, b, n in runs:
            t = tmp if cur is not None else dst
            if len(runs) == 1: A(f"s_lshl_b32 {t}, {src}, {b + sh}")
            else:
                A(f"s_bfe_u32 {t}, {src}, {(n << 16) | i}")
                A(f"s_lshl_b32 {t}, {t}, {b + sh}")
            if cur is not None: A(f"s_add_u32 {dst}, {cur}, {t}")
            cur = dst
    scat_c = lambda v, bits, sh: sum(((v >> i) & 1) << (b + sh) for i, b in enumerate(bits))
    def stamp(i):
        if stamps and i < stamps:
            A(f"s_memrealtime s[{70+2*i}:{71+2*i}]")
    def dbg_store(pairs):
        A("s_waitcnt lgkmcnt(0)")
        A("s_mov_b64 exec, 1")
        for w, sr, inv in pairs:
            A(f"s_and_b32 s43, {sr}, 0xffffff")
            if inv: A("s_xor_b32 s43, s43, 0xffffff")
            A("v_mov_b32 v10, s43")
            A(f"v_mov_b32 v9, {4*w}")
            A("global_atomic_umax v9, v10, s[16:17]")
            A("s_nop 1")
        A("s_mov_b64 exec, -1")
    def stamp_store(idx):
        A("s_waitcnt lgkmcnt(0)")
        A("s_add_u32 s90, s18, 0x20000000\ns_addc_u32 s91, s19, 0")
        A("s_lshl_b32 s37, s2, 7\nv_mov_b32 v9, s37")
        for i in idx:
            A(f"v_mov_b32 v10, s{70+2*i}\nv_mov_b32 v11, s{71+2*i}")
            A("s_mov_b64 exec, 1")
            A(f"global_store_dwordx2 v9, v[10:11], s[90:91] offset:{8*i}")
            A("s_mov_b64 exec, -1")
            A("s_nop 1")

    A(HEADER + f"; @launch grid=(256,1,1) block=(512,1,1) lds={LDS}" + DOC)
    A('.amdgcn_target "amdgcn-amd-amdhsa--gfx950"')
    A(".text")
    A(f".globl {KN}\n.p2align 8\n.type {KN},@function\n{KN}:")
    A("s_cmp_ge_u32 s2, 256")
    A("s_cbranch_scc1 L_done")
    A("s_load_dwordx16 s[4:19], s[0:1], 0")
    stamp(0)
    A("v_lshrrev_b32 v1, 6, v0")
    A("v_and_b32 v0, 63, v0")
    A("v_readfirstlane_b32 s3, v1")
    A("s_and_b32 s20, s2, 15")
    A("s_lshr_b32 s21, s2, 4")
    if hx < 4:
        A(f"s_lshr_b32 s69, s21, {hxs}")
        A(f"s_and_b32 s69, s69, {hx}")
    else:
        tab = {4: [0, 2, 1, 3], 5: [0, 3, 1, 2], 6: [0, 1, 3, 2]}[hx]
        A("s_and_b32 s69, s21, 3")
        A("s_lshl_b32 s69, s69, 1")
        A(f"s_lshr_b32 s69, {sum(v << (2*i) for i, v in enumerate(tab))}, s69")
        A("s_and_b32 s69, s69, 3")
    A("v_lshrrev_b32 v4, 4, v0")
    A("v_and_b32 v5, 15, v0")
    A(f"v_mov_b32 v6, {CN0}")
    A("v_mov_b32 v7, 1")
    A("v_lshlrev_b32 v2, 4, v0")
    A("s_cmp_ge_u32 s3, 4")
    A("s_cbranch_scc1 L_helper")

    RING = 16; Q = 48; P = 64; X0, X1, Y, T = 72, 73, 74, 75
    M2 = 76; SA = 77; WA = 78; W = 79; ACC = 80; TM = 88; OA = 96; CA = 97; LP = 98; DA = 99; DV0 = 100
    A("v_add_u32 v3, 4096, v2")
    A("v_lshlrev_b32 v8, 4, v5")
    A("s_lshl_b32 s36, s21, 24")
    scat("s36", "s20", MB, 0, "s37", add="s36")
    A("s_lshl_b32 s37, s3, 13")
    A("s_add_u32 s36, s36, s37")
    A("s_lshl_b32 s50, s69, 22")
    A("s_add_u32 s50, s50, s36")
    A("s_lshl_b32 s39, s21, 10")
    for h in range(4):
        A(f"s_xor_b32 s{52+h}, s69, {h}")
        A(f"s_lshl_b32 s{52+h}, s{52+h}, 8")
        A(f"s_add_u32 s{52+h}, s{52+h}, s39")
    A("s_waitcnt lgkmcnt(0)")
    A("s_mov_b32 s24, s6\ns_mov_b32 s25, s7\ns_mov_b32 s26, 0x10000000\ns_mov_b32 s27, 0x20000")
    A("s_mov_b32 s32, s4\ns_mov_b32 s33, s5\ns_mov_b32 s34, 16384\ns_mov_b32 s35, 0x20000")
    RINGB = 104
    def kvload(idx, srd, soff, RING=RING):
        s = idx % 8
        A(f"buffer_load_dwordx4 v[{RING+4*s}:{RING+4*s+3}], v{2 + s//4}, s[{srd}:{srd+3}], {soff} offen offset:{(s%4)*1024} {kvpol}")
    for h in range(4):
        A(f"buffer_load_dwordx4 v[{Q+4*h}:{Q+4*h+3}], v8, s[32:35], s{52+h} offen {qpol}")
    for u in range(D): kvload(u, 24, "s50")
    A("s_mov_b32 s28, s8\ns_mov_b32 s29, s9\ns_mov_b32 s30, 0x10000000\ns_mov_b32 s31, 0x20000")
    if prio: A(f"s_setprio {prio}")
    A("v_and_b32 v9, 1, v0")
    A("v_sub_u32 v10, 0, v9")
    A(f"v_and_b32 v{M2}, 0xffff0000, v10")
    A(f"v_mul_u32_u24 v{SA}, {PSTR}, v9")
    A("v_bfe_u32 v10, v0, 2, 2")
    A("v_lshlrev_b32 v10, 2, v10")
    A("v_add_u32 v10, v10, v4")
    A("s_lshl_b32 s37, s3, 5")
    A("v_add_u32 v10, s37, v10")
    A(f"v_lshl_add_u32 v{SA}, v10, 1, v{SA}")
    A(f"v_add_u32 v{SA}, {SW0}, v{SA}")
    A("v_and_b32 v10, 7, v0")
    A("v_lshlrev_b32 v10, 2, v10")
    A("v_add_u32 v10, v10, v4")
    A(f"v_lshlrev_b32 v{LP}, 2, v10")
    A("v_add_u32 v10, s37, v10")
    A(f"v_lshlrev_b32 v{WA}, 2, v10")
    A(f"v_add_u32 v{WA}, {SW0}, v{WA}")
    A("v_lshlrev_b32 v10, 5, v5")
    A("v_lshl_add_u32 v10, v4, 3, v10")
    A("s_lshl_b32 s37, s3, 9")
    A("v_add_u32 v10, s37, v10")
    A(f"v_add_u32 v{OA}, {OB0}, v10")
    for k in range(8): A(f"v_mov_b32 v{ACC+k}, 0")
    A(f"v_mov_b32 v{CA}, v6")
    if stg: A("s_mov_b32 s88, 0\nv_mov_b32 v101, 0")
    A("s_cmp_eq_u32 s3, 0")
    A("s_cselect_b32 s48, 1, 0")
    A("s_mov_b32 s49, 0")
    A("s_mov_b32 s40, 0xffff0000")
    A("s_barrier")
    if dbgst: A(f"s_waitcnt vmcnt({D-1})\ns_memrealtime s[84:85]")
    A("s_mov_b32 s38, 0")
    A("s_mov_b32 s41, s50")

    def next_off():
        A("s_add_u32 s43, s38, 1")
        A("s_lshr_b32 s44, s43, 3")
        A("s_and_b32 s43, s43, 7")
        A("s_xor_b32 s44, s44, s69")
        A("s_lshl_b32 s44, s44, 22")
        A("s_add_u32 s42, s36, s44")
        scat("s42", "s43", TB, 0, "s44", add="s42")
    def tick():
        l = newlab("nt")
        A("s_cmp_eq_u32 s48, 0")
        A(f"s_cbranch_scc1 {l}")
        lds_inc(cT, "v6", "v7")
        A(f"{l}:")
    def stage_done():
        if stg:
            A("s_memrealtime s[86:87]\ns_waitcnt lgkmcnt(0)\ns_mov_b32 m0, s88\ns_nop 0\nv_writelane_b32 v101, s86, m0\ns_add_u32 s88, s88, 1")
        lds_inc(cS, f"v{CA}", "v7")
        A(f"v_add_u32 v{CA}, 4, v{CA}")

    def kstep(cur_srd, nxt_srd, nxt_off, Din, Dout):
        issued = Din
        for u in range(8):
            A(f"s_waitcnt vmcnt({issued - u - 1})")
            want = u + 1 + (Din if u < 7 else Dout) if Din == Dout else u + 1 + Din + (Dout - Din) * (u + 1) // 8
            while issued < want:
                if issued < 8: kvload(issued, cur_srd, "s41")
                else: kvload(issued, nxt_srd, nxt_off)
                issued += 1
            r = RING + 4*u
            A(f"v_dot2_f32_bf16 v{P+u}, v{r}, v{Q}, 0")
            for m in range(1, 4):
                A(f"v_dot2_f32_bf16 v{P+u}, v{r+m}, v{Q+m}, v{P+u}")
            if u % 4 == 3:
                e = u // 4; p = P + 4*e
                A(f"v_add_f32_dpp v{X0}, v{p}, v{p} row_ror:8 row_mask:0xf bank_mask:0x3")
                A(f"v_add_f32_dpp v{X1}, v{p+1}, v{p+1} row_ror:8 row_mask:0xf bank_mask:0x3")
                A("s_nop 0")
                A(f"v_add_f32_dpp v{X0}, v{p+2}, v{p+2} row_ror:8 row_mask:0xf bank_mask:0xc")
                A(f"v_add_f32_dpp v{X1}, v{p+3}, v{p+3} row_ror:8 row_mask:0xf bank_mask:0xc")
                A(f"s_nop 0")
                A(f"v_add_f32_dpp v{Y}, v{X0}, v{X0} row_half_mirror row_mask:0xf bank_mask:0x5")
                A("s_nop 1")
                A(f"v_add_f32_dpp v{Y}, v{X1}, v{X1} row_half_mirror row_mask:0xf bank_mask:0xa")
                A("s_nop 1")
                A(f"v_add_f32_dpp v{Y}, v{Y}, v{Y} quad_perm:[1,0,3,2] row_mask:0xf bank_mask:0xf")
                A("s_nop 1")
                A(f"v_add_f32_dpp v{Y}, v{Y}, v{Y} quad_perm:[2,3,0,1] row_mask:0xf bank_mask:0xf")
                A(f"v_and_b32 v{T}, v{Y}, v{M2}")
                A(f"v_sub_f32 v{T}, v{Y}, v{T}")
                A(f"ds_write_b16_d16_hi v{SA}, v{T} offset:{32*e}")
        assert issued == 8 + Dout
        A(f"v_add_u32 v{SA}, 256, v{SA}")

    A("L_kloop:")
    next_off()
    kstep(24, 24, "s42", D, D)
    tick()
    A("s_mov_b32 s41, s42")
    A("s_add_u32 s38, s38, 1")
    A("s_and_b32 s43, s38, 7")
    A("s_cbranch_scc1 L_knohead")
    stage_done()
    A(f"v_add_u32 v{SA}, {SWS - 2048}, v{SA}")
    for k in range(12): A(f"v_mov_b32 v{Q+k}, v{Q+4+k}")
    A("L_knohead:")
    A("s_cmp_lt_u32 s38, 31")
    A("s_cbranch_scc1 L_kloop")
    kstep(24, 28, "s50", D, DV)
    tick()
    stage_done()
    stamp(1)
    def vproc(u, RING=RING):
        r = RING + 4*u
        for m in range(4):
            A(f"v_lshlrev_b32 v{TM+2*m}, 16, v{r+m}")
            A(f"v_and_b32 v{TM+2*m+1}, s40, v{r+m}")
        for k in range(8):
            A(f"v_fmac_f32_dpp v{ACC+k}, v{W}, v{TM+k} row_newbcast:{u} row_mask:0xf bank_mask:0xf")
    def vpart(u0, u1, drain=False, pull=False):
        for u in range(u0, u1):
            if drain:
                A(f"s_waitcnt vmcnt({7-u})")
            else:
                A(f"s_waitcnt vmcnt({DV-1})")
                if u + DV < 8: kvload(u + DV, 28, "s41")
                else: kvload(u + DV, 28, "s42")
            if u == 0: A("s_waitcnt lgkmcnt(0)")
            if pull and u == u1 - 1:
                A("s_mov_b64 exec, 1")
                A(f"ds_add_rtn_u32 v{DV0}, v6, v7 offset:{cQ}")
                A("s_mov_b64 exec, -1")
            vproc(u)
    def vstep():
        A(f"ds_read_b32 v{W}, v{WA}")
        vpart(0, 8)
        A(f"v_add_u32 v{WA}, 512, v{WA}")
    def vhead_end():
        A("s_nop 1")
        for k in range(4): A(f"v_permlane32_swap_b32 v{ACC+k}, v{ACC+k+4}")
        for k in range(4): A(f"v_add_f32 v{ACC+k}, v{ACC+k}, v{ACC+k+4}")
        A("s_nop 0")
        for k in range(2): A(f"v_permlane16_swap_b32 v{ACC+k}, v{ACC+k+2}")
        for k in range(2): A(f"v_add_f32 v{TM+k}, v{ACC+k}, v{ACC+k+2}")
        A(f"ds_write_b64 v{OA}, v[{TM}:{TM+1}]")
        stage_done()
    A("s_mov_b32 s38, 0")
    A("s_mov_b32 s41, s50")
    A("L_vhead:")
    lds_wait(cW - 16, 4, f"v{CA}", f"v{T}", "s43", "s46")
    A("L_vloop:")
    next_off()
    vstep()
    tick()
    A("s_mov_b32 s41, s42")
    A("s_add_u32 s38, s38, 1")
    A(f"s_cmp_eq_u32 s38, {31 - NP - NL}")
    A("s_cbranch_scc1 L_dyn")
    A("s_and_b32 s43, s38, 7")
    A("s_cbranch_scc1 L_vloop")
    vhead_end()
    for k in range(8): A(f"v_mov_b32 v{ACC+k}, 0")
    A(f"v_add_u32 v{WA}, {SWS - 4096}, v{WA}")
    A(f"v_add_u32 v{OA}, 2048, v{OA}")
    A("s_branch L_vhead")
    def getdesc(n, drain):
        A("s_waitcnt lgkmcnt(0)")
        A(f"v_readfirstlane_b32 s43, v{DV0}")
        A("s_mov_b32 s46, 0x40000")
        A("s_and_b32 s45, s43, 3")
        A("s_lshr_b32 s43, s43, 2")
        A("s_lshl_b32 s43, s43, 3")
        A(f"s_add_u32 s43, s43, {DS0}")
        A(f"v_mov_b32 v{DA}, s43")
        A(f"L_dq{n}:")
        A(f"ds_read_b32 v{DV0}, v{DA}")
        A("s_waitcnt lgkmcnt(0)")
        A(f"v_readfirstlane_b32 s43, v{DV0}")
        A("s_nop 0")
        A("s_cmp_lg_u32 s43, 0")
        A(f"s_cbranch_scc1 L_dq_ok{n}")
        A("s_sub_u32 s46, s46, 1")
        A(f"s_cbranch_scc1 {drain}")
        A("s_sleep 1")
        A(f"s_branch L_dq{n}")
        A(f"L_dq_ok{n}:")
        A("s_cmp_eq_u32 s43, -1")
        A(f"s_cbranch_scc1 {drain}")
        A("s_lshl_b32 s44, s45, 13")
        A("s_add_u32 s42, s43, s44")
        A("s_sub_u32 s42, s42, 1")
    def getw():
        lds_wait(4, 1, f"v{DA}", f"v{DV0}", "s43", "s46", sleep=1)
        A("s_lshl_b32 s45, s45, 7")
        A("s_add_u32 s43, s43, s45")
        A(f"v_add_u32 v{WA}, s43, v{LP}")
    if gc:
        A("L_dyn:")
        for u in range(DV, 8): kvload(u, 28, "s41")
        for n, (X, Yb) in enumerate(((RING, RINGB), (RINGB, RING))):
            A(f"L_dyn{n}:")
            A(f"ds_read_b32 v{W}, v{WA}")
            for u in range(gc):
                A(f"s_waitcnt vmcnt({7-u})")
                if u == 0: A("s_waitcnt lgkmcnt(0)")
                if u == gc - 1:
                    A("s_mov_b64 exec, 1")
                    A(f"ds_add_rtn_u32 v{DV0}, v6, v7 offset:{cQ}")
                    A("s_mov_b64 exec, -1")
                vproc(u, X)
            getdesc(n, f"L_drain{n}")
            for u in range(8): kvload(u, 28, "s42", Yb)
            for u in range(gc, 8):
                A(f"s_waitcnt vmcnt({15-u})")
                vproc(u, X)
            getw()
        A("s_branch L_dyn0")
        for n, X in enumerate((RING, RINGB)):
            A(f"L_drain{n}:")
            for u in range(gc, 8):
                A(f"s_waitcnt vmcnt({7-u})")
                vproc(u, X)
            if n == 0: A("s_branch L_vend")
        A("L_vend:")
        vhead_end()
    else:
        A("; ---- dynamic tail: 32-row sub-tiles pulled from the workgroup's queue (own tiles, then pooled tiles) ----")
        A("L_dyn:")
        A(f"ds_read_b32 v{W}, v{WA}")
        vpart(0, 8 - DV, pull=True)
        getdesc(0, "L_drain")
        vpart(8 - DV, 8)
        getw()
        A("s_mov_b32 s41, s42")
        A("s_branch L_dyn")
        A("L_drain:")
        vpart(8 - DV, 8, drain=True)
        vhead_end()
    if stamps:
        stamp(2)
        if stamps >= 12:
            A("s_waitcnt lgkmcnt(0)")
            A("s_add_u32 s90, s18, 0x20000000\ns_addc_u32 s91, s19, 0")
            A("s_lshl_b32 s37, s2, 7\ns_lshl_b32 s38, s3, 3\ns_add_u32 s37, s37, s38\nv_mov_b32 v9, s37")
            A("v_mov_b32 v10, s74\nv_mov_b32 v11, s75\ns_mov_b64 exec, 1")
            A("global_store_dwordx2 v9, v[10:11], s[90:91] offset:64\ns_mov_b64 exec, -1\ns_nop 1")
        A("s_cmp_lg_u32 s3, 0\ns_cbranch_scc1 L_done")
        if dbgst: dbg_store([(0, "s70", 1), (1, "s70", 0), (2, "s72", 1), (3, "s72", 0), (4, "s74", 1), (5, "s74", 0), (8, "s84", 1), (9, "s84", 0)])
        else: stamp_store(range(min(stamps, 3)))
        if stg:
            A("v_lshl_add_u32 v9, v0, 2, v9\ns_mov_b64 exec, 0xff\nglobal_store_dword v9, v101, s[90:91] offset:64")
    A("s_endpgm")

    F0 = 128
    EA, SB, PA, WW, M = 10, 11, 12, 13, 16
    TG = 20
    AC = 24
    BB = 40
    RA = 56
    PV = 88
    G = 56
    A("L_helper:")
    A("s_sub_u32 s22, s3, 4")
    A("v_mov_b32 v8, 0")
    A("v_lshl_add_u32 v9, v0, 2, v6")
    for i in range(4): A(f"ds_write_b32 v9, v8 offset:{256*i}")
    A("s_waitcnt lgkmcnt(0)")
    A("s_barrier")
    A("s_mov_b32 s32, s18\ns_mov_b32 s33, s19\ns_mov_b32 s34, 0x40000000\ns_mov_b32 s35, 0x20000")
    if wsoff:
        A(f"s_add_u32 s32, s32, {wsoff << 20}\ns_addc_u32 s33, s33, 0\ns_mov_b32 s34, {(1024 - wsoff) << 20}")
    A("s_lshl_b32 s47, s21, 8")
    A(f"buffer_load_dword v{TG}, off, s[32:35], s47 sc1")
    A(f"s_add_u32 s68, s47, {WS_C}")
    A("s_or_b32 s43, s20, s22")
    A("s_cbranch_scc1 L_noinit")
    A("s_mov_b64 exec, 1")
    A("buffer_store_dword v8, off, s[32:35], s68 sc1")
    A("s_mov_b64 exec, -1")
    A("L_noinit:")
    A("s_mov_b32 s24, s10\ns_mov_b32 s25, s11\ns_mov_b32 s26, 0x200000\ns_mov_b32 s27, 0x20000")
    A("s_mov_b32 s28, s12\ns_mov_b32 s29, s13\ns_mov_b32 s30, 0x200000\ns_mov_b32 s31, 0x20000")
    A("s_mov_b32 s52, s14\ns_mov_b32 s53, s15\ns_mov_b32 s54, 16384\ns_mov_b32 s55, 0x20000")
    A("s_lshl_b32 s36, s22, 19")
    scat("s37", "s20", MB, -7, "s43")
    A("s_add_u32 s36, s36, s37")
    A("v_and_b32 v8, 1, v4")
    A(f"v_lshlrev_b32 v8, {TB[0]-7}, v8")
    A("v_lshrrev_b32 v9, 1, v4")
    A(f"v_lshlrev_b32 v9, {TB[1]-7}, v9")
    A("v_add_u32 v8, v8, v9")
    A("v_lshl_add_u32 v124, v5, 4, v8")
    A(f"v_add_u32 v125, {1 << (TB[2]-7)}, v124")
    A(f"s_mul_i32 s38, s22, {16*ESTR}")
    if tlb:
        A("s_mov_b32 s64, s6\ns_mov_b32 s65, s7\ns_mov_b32 s66, 0x10000000\ns_mov_b32 s67, 0x20000")
        A("s_mov_b32 s92, s8\ns_mov_b32 s93, s9\ns_mov_b32 s94, 0x10000000\ns_mov_b32 s95, 0x20000")
        A("s_lshl_b32 s44, s21, 24\ns_lshl_b32 s45, s20, 18\ns_add_u32 s44, s44, s45\ns_lshl_b32 s45, s22, 22\ns_add_u32 s44, s44, s45")
    XS = 8192 + 16
    if pf:
        A("; pull one row of this member's E and F slices into L2 for all 16 groups (one burst chip-wide)")
        A("s_lshl_b32 s43, s21, 2")
        A("s_add_u32 s43, s43, s22")
        A("s_lshl_b32 s43, s43, 15")
        A("s_add_u32 s43, s43, s37")
        for i, srd in enumerate((24, 28)):
            for hf in range(2):
                if (noe and i == 0) or (nof and i == 1) or (pfsplit and i == 1): continue
                A(f"buffer_load_dwordx4 v[{F0+8*i+4*hf}:{F0+8*i+4*hf+3}], v{124+hf}, s[{srd}:{srd+3}], s43 offen {pfpol}")
        if pfw: A("s_waitcnt vmcnt(0)")
        if pfw > 1: A(f"s_sleep {pfw}")
        A("s_mov_b32 s45, s43")
    if e4:
        A("v_lshlrev_b32 v124, 15, v4")
        A("v_lshl_add_u32 v124, v5, 4, v124")
        A(f"s_mul_i32 s38, s22, {4*XS}")
        for x in range(4):
            for t in range(8):
                A(f"s_add_u32 s43, s36, {x*131072 + scat_c(t, TB, -7)}")
                A(f"s_add_u32 m0, s38, {x*XS + 1024*t}")
                A(f"s_waitcnt vmcnt({hthr-1})")
                if not (noef or noe): A(f"buffer_load_dwordx4 v124, s[24:27], s43 offen {epol} lds")
    for rr in range(0 if e4 else 16):
        if pf and pfsplit == rr + 1:
            for hf in range(2):
                A(f"buffer_load_dwordx4 v[{F0+8+4*hf}:{F0+8+4*hf+3}], v{124+hf}, s[28:31], s45 offen {pfpol}")
        for hf in range(2):
            A(f"s_add_u32 m0, s38, {rr*ESTR + 1024*hf}")
            A(f"s_waitcnt vmcnt({hthr-1 - (1 if ealt and (2*rr+hf) % ealt == 0 else 0)})")
            if not (noef or noe): A(f"buffer_load_dwordx4 v{124+hf}, s[24:27], s36 offen {epol} lds")
        A("s_add_u32 s36, s36, 32768")
    A(f"v_lshlrev_b32 v3, {15 if f4 else 19}, v4")
    A("v_lshl_add_u32 v3, v5, 4, v3")
    A(f"v_add_u32 v126, {1 << (TB[0]-7)}, v3")
    scat("s36", "s22", TB[1:], -7, "s43", add="s37")
    for t in range(16):
        if ftouch and t % ftouch == 0:
            if t == 0:
                A("v_lshlrev_b32 v122, 15, v0")
                A("s_lshl_b32 s44, s22, 19")
                A("v_add_u32 v122, s44, v122")
            A(f"s_mov_b64 exec, {(1 << ftouch) - 1}")
            A("buffer_load_dword v123, v122, s[28:31], s36 offen nt")
            A("s_mov_b64 exec, -1")
        for tau in range(2):
            A(f"s_waitcnt vmcnt({fthr-1 - (1 if falt and (2*t+tau) % falt == 0 else 0)})")
            r = F0 + 64*tau + 4*t
            if not (noef or nof): A(f"buffer_load_dwordx4 v[{r}:{r+3}], v{126 if tau else 3}, s[28:31], s36 offen {fpol}")
        A(f"s_add_u32 s36, s36, {131072 if f4 else 32768}")
    if noef or nof: A("s_waitcnt vmcnt(0)")
    A(f"v_readfirstlane_b32 s56, v{TG}\ns_nop 0")
    A("s_add_u32 s56, s56, 0x01010101")
    for k in range(4):
        A(f"s_bfe_u32 s43, s56, {(8 << 16) | (8*k)}")
        A(f"v_mov_b32 v{TG+k}, s43")
    A("s_mov_b32 s57, 0xffffff00")
    A("s_mov_b32 s58, 0x0c0c0400")
    A("s_mov_b32 s59, 0x04000c0c")
    if e4:
        A(f"s_mul_i32 s36, s22, {4*XS}")
        A("v_lshrrev_b32 v8, 2, v5")
        A(f"v_mul_u32_u24 v{EA}, {XS}, v8")
        A("v_and_b32 v8, 3, v5")
        A(f"v_lshl_add_u32 v{EA}, v8, 8, v{EA}")
    else:
        A(f"s_mul_i32 s36, s22, {16*ESTR}")
        A(f"v_mul_u32_u24 v{EA}, {ESTR}, v5")
    A(f"v_lshl_add_u32 v{EA}, v4, 4, v{EA}")
    A(f"v_add_u32 v{EA}, s36, v{EA}")
    A("v_and_b32 v8, 1, v0")
    A(f"v_mul_u32_u24 v{SB}, {PSTR}, v8")
    A("v_bfe_u32 v8, v0, 1, 1")
    A(f"v_mul_u32_u24 v8, {SWS}, v8")
    A(f"v_add_u32 v{SB}, v{SB}, v8")
    A(f"v_lshl_add_u32 v{SB}, v4, 4, v{SB}")
    A(f"v_add_u32 v{SB}, {SW0}, v{SB}")
    A("v_bfe_u32 v8, v0, 3, 1")
    A(f"v_lshlrev_b32 v{PA}, 8, v8")
    A(f"v_lshl_add_u32 v{PA}, v4, 6, v{PA}")
    A(f"v_add_u32 v{PA}, {PD0}, v{PA}")
    A("v_and_b32 v8, 7, v0")
    A(f"v_lshlrev_b32 v{WW}, 2, v8")
    A(f"v_lshl_add_u32 v{WW}, v4, 7, v{WW}")
    A("s_lshl_b32 s36, s22, 10")
    A(f"v_add_u32 v{WW}, s36, v{WW}")
    A(f"v_add_u32 v{WW}, {SW0}, v{WW}")
    A("v_and_b32 v9, 1, v0")
    A("v_lshlrev_b32 v9, 4, v9")
    A("v_mov_b32 v14, 0xffff")
    A("v_lshlrev_b32 v9, v9, v14")
    A("v_bfe_u32 v8, v0, 1, 2")
    for m in range(4):
        A(f"v_cmp_eq_u32 vcc, {m}, v8")
        A("s_nop 1")
        A(f"v_cndmask_b32 v{M+m}, 0, v9, vcc")
    A("s_lshl_b32 s60, s21, 14")
    A(f"s_add_u32 s60, s60, {WS_SC}")
    A("s_lshl_b32 s61, s21, 15")
    A(f"s_add_u32 s61, s61, {WS_O}")
    if stamps > 4: stamp(4)

    def put_tags(r):
        for k in range(4): A(f"v_and_or_b32 v{r+k}, v{r+k}, s57, v{TG+k}")
    def check_tags(r, t0, t1, dst):
        A(f"v_perm_b32 v{t0}, v{r+1}, v{r}, s58")
        A(f"v_perm_b32 v{t1}, v{r+3}, v{r+2}, s59")
        A(f"v_or_b32 v{t0}, v{t0}, v{t1}")
        A(f"v_cmp_ne_u32 {dst}, s56, v{t0}")

    def epass(a):
        A("; ---- scores partial of a pair of heads: E (16 rows per wave) x s (columns = head x hi/lo); last wave publishes ----")
        lds_wait(cS + 8*a, 4, "v6", "v8", "s43", "s46", sleep=slp)
        lds_wait(cS + 8*a + 4, 4, "v6", "v8", "s43", "s46", sleep=slp)
        for k in range(4): A(f"v_mov_b32 v{AC+k}, 0")
        for ch in range(8):
            for kk in range(4):
                A(f"ds_read_b128 v[{RA+8*kk}:{RA+8*kk+3}], v{EA} offset:{ch*1024 + kk*64 if e4 else (4*ch+kk)*64}")
                A(f"ds_read_b128 v[{RA+8*kk+4}:{RA+8*kk+7}], v{SB} offset:{2*a*SWS + (4*ch+kk)*64}")
            for kk in range(4):
                A(f"s_waitcnt lgkmcnt({6-2*kk})")
                A(f"v_mfma_f32_16x16x32_bf16 v[{AC}:{AC+3}], v[{RA+8*kk}:{RA+8*kk+3}], v[{RA+8*kk+4}:{RA+8*kk+7}], v[{AC}:{AC+3}]")
        A("s_lshl_b32 s36, s22, 6")
        A("v_bfe_u32 v9, v0, 1, 1")
        A("v_lshlrev_b32 v8, 4, v4")
        A("v_lshl_add_u32 v8, v9, 8, v8")
        A("v_add_u32 v8, s36, v8")
        A(f"v_add_u32 v8, {SC0 + 512*a}, v8")
        A("s_nop 4")
        for k in range(4):
            A(f"v_add_f32_dpp v{AC+4+k}, v{AC+k}, v{AC+k} quad_perm:[1,0,3,2] row_mask:0xf bank_mask:0xf")
        A(f"ds_write_b128 v8, v[{AC+4}:{AC+7}]")
        A("s_mov_b64 exec, 1")
        A(f"ds_add_rtn_u32 v8, v6, v7 offset:{cE + 4*a}")
        A("s_mov_b64 exec, -1")
        A("s_waitcnt lgkmcnt(0)")
        A("v_readfirstlane_b32 s43, v8")
        sk = newlab("nopub")
        A("s_nop 0")
        A(f"s_cmp_lg_u32 s43, 3")
        A(f"s_cbranch_scc1 {sk}")
        if sat:
            A("v_lshlrev_b32 v8, 2, v0")
            A(f"v_add_u32 v9, {SC0 + 512*a}, v8")
            A(f"ds_read_b32 v{G}, v9")
            A(f"ds_read_b32 v{G+1}, v9 offset:256")
            A(f"s_add_u32 s37, s60, {8192*a}")
            A("s_waitcnt lgkmcnt(0)")
            A(f"buffer_atomic_add_f32 v{G}, v8, s[32:35], s37 offen")
            A(f"buffer_atomic_add_f32 v{G+1}, v8, s[32:35], s37 offen offset:256")
            if sat > 1:
                A("s_waitcnt vmcnt(0)")
                A("v_mov_b32 v9, 1")
                A("s_mov_b64 exec, 1")
                A("buffer_atomic_add v9, off, s[32:35], s37 offset:1024 sc0")
                A("s_mov_b64 exec, -1")
                A("s_waitcnt vmcnt(0)")
            A(f"s_branch {sk}")
        A(f"v_add_u32 v9, {SC0 + 512*a}, v2")
        A("s_mov_b32 exec_hi, 0")
        A(f"ds_read_b128 v[{G}:{G+3}], v9")
        A("s_lshl_b32 s38, s20, 9")
        A("s_add_u32 s37, s60, s38")
        A(f"s_add_u32 s37, s37, {8192*a}")
        A("s_waitcnt lgkmcnt(0)")
        put_tags(G)
        if not nosst: A(f"buffer_store_dwordx4 v[{G}:{G+3}], v2, s[32:35], s37 offen {sstpol}")
        A("s_mov_b64 exec, -1")
        A("s_nop 1")
        A(f"{sk}:")

    def pw(a):
        sk = newlab("nop"); oth = newlab("oth"); com = newlab("com")
        A(f"s_cmp_lg_u32 s22, 0")
        A(f"s_cbranch_scc1 {sk}")
        A("s_lshl_b32 s39, s21, 10")
        A(f"s_add_u32 s39, s39, {WS_P + 512*a}")
        A(f"s_add_u32 s43, s21, {8*a}")
        A("s_and_b32 s43, s43, 15")
        A("s_cmp_lg_u32 s43, s20")
        A(f"s_cbranch_scc1 {oth}")
        lds_wait(cT, (tAR, tBR)[a], "v6", "v8", "s43", "s46", sleep=slp)
        A(f"s_add_u32 s37, s60, {8192*a}")
        A("s_add_u32 s38, s37, 4096")
        l = newlab("gp"); d = newlab("gpd")
        A(f"s_mov_b32 s46, {0 if nosst else 0x8000}")
        if nosg: A(f"s_branch {d}")
        A(f"{l}:")
        for i in range(8):
            A(f"buffer_load_dwordx4 v[{G+4*i}:{G+4*i+3}], v2, s[32:35], {'s37' if i < 4 else 's38'} offen offset:{1024*(i%4)} {ldpol}")
        A("s_mov_b64 s[62:63], 0")
        for i in range(8):
            A(f"s_waitcnt vmcnt({7-i})")
            check_tags(G+4*i, 8, 9, "vcc")
            A("s_or_b64 s[62:63], s[62:63], vcc")
        A("s_cmp_eq_u64 s[62:63], 0")
        A(f"s_cbranch_scc1 {d}")
        A("s_sub_u32 s46, s46, 1")
        A(f"s_cbranch_scc1 {d}")
        A(f"s_sleep {gslp}")
        A(f"s_branch {l}")
        A(f"{d}:")
        for k in range(32): A(f"v_and_b32 v{G+k}, s57, v{G+k}")
        for st in (16, 8, 4):
            for k in range(st): A(f"v_add_f32 v{G+k}, v{G+k}, v{G+st+k}")
        for k in range(4): A(f"v_mov_b32 v{G+4+k}, v{G+k}")
        A("s_nop 1")
        for k in range(4): A(f"v_permlane32_swap_b32 v{G+k}, v{G+4+k}")
        for k in range(4): A(f"v_add_f32 v{G+k}, v{G+k}, v{G+4+k}")
        A(f"v_max_f32 v{G+4}, v{G}, v{G+1}")
        A(f"v_max3_f32 v{G+4}, v{G+4}, v{G+2}, v{G+3}")
        for rot in (8, 4, 2, 1):
            A("s_nop 1")
            A(f"v_max_f32_dpp v{G+4}, v{G+4}, v{G+4} row_ror:{rot} row_mask:0xf bank_mask:0xf")
        A("s_mov_b32 s36, 0x3e0293ee")
        for k in range(4):
            A(f"v_sub_f32 v{G+k}, v{G+k}, v{G+4}")
            A(f"v_mul_f32 v{G+k}, s36, v{G+k}")
            A(f"v_exp_f32 v{G+k}, v{G+k}")
        A("s_nop 0")
        A(f"v_add_f32 v{G+4}, v{G}, v{G+1}")
        A(f"v_add_f32 v{G+5}, v{G+2}, v{G+3}")
        A(f"v_add_f32 v{G+4}, v{G+4}, v{G+5}")
        for rot in (8, 4, 2, 1):
            A("s_nop 1")
            A(f"v_add_f32_dpp v{G+4}, v{G+4}, v{G+4} row_ror:{rot} row_mask:0xf bank_mask:0xf")
        A(f"v_rcp_f32 v{G+4}, v{G+4}")
        A("s_nop 0")
        for k in range(4): A(f"v_mul_f32 v{G+k}, v{G+k}, v{G+4}")
        put_tags(G)
        A("s_mov_b32 exec_hi, 0")
        if not nopst: A(f"buffer_store_dwordx4 v[{G}:{G+3}], v2, s[32:35], s39 offen {stpol}")
        A("s_mov_b64 exec, -1")
        A(f"s_branch {com}")
        A(f"{oth}:")
        lds_wait(cT, (tAO, tBO)[a], "v6", "v8", "s43", "s46", sleep=slp)
        A("v_and_b32 v3, 0x1ff, v2")
        l = newlab("pp")
        A(f"s_mov_b32 s46, {0 if nopst else 0x8000}")
        if nopld: A(f"s_branch {com}")
        A(f"{l}:")
        A(f"buffer_load_dwordx4 v[{G}:{G+3}], v3, s[32:35], s39 offen {ldpol}")
        A("s_waitcnt vmcnt(0)")
        check_tags(G, 8, 9, "vcc")
        A("s_cmp_eq_u64 vcc, 0")
        A(f"s_cbranch_scc1 {com}")
        A("s_sub_u32 s46, s46, 1")
        A(f"s_cbranch_scc1 {com}")
        A(f"s_sleep {gslp}")
        A(f"s_branch {l}")
        A(f"{com}:")
        A("v_lshrrev_b32 v8, 5, v0")
        A("v_sub_u32 v9, 0, v8")
        A("v_and_b32 v9, 0xffff0000, v9")
        A("v_mov_b32 v14, 0x03020302")
        for k in range(4):
            A(f"v_and_b32 v{G+4+k}, s57, v{G+k}")
            A(f"v_and_b32 v{G+8}, v{G+4+k}, v9")
            A(f"v_sub_f32 v{G+4+k}, v{G+4+k}, v{G+8}")
            A(f"v_perm_b32 v{G+4+k}, v{G+4+k}, v{G+4+k}, v14")
        A("v_lshlrev_b32 v8, 8, v8")
        A(f"v_lshl_add_u32 v8, v5, {2 if f4 else 4}, v8")
        A("v_and_b32 v9, 1, v4")
        A("v_lshl_add_u32 v8, v9, 9, v8")
        A(f"v_add_u32 v8, {PD0 + 1024*a}, v8")
        if f4:
            for k in range(4): A(f"ds_write_b32 v8, v{G+4+k} offset:{64*k}")
        else:
            A(f"ds_write_b128 v8, v[{G+4}:{G+7}]")
        lds_inc(cP + 4*a, "v6", "v7")
        A(f"{sk}:")
        lds_wait(cP + 4*a, 1, "v6", "v8", "s43", "s46", sleep=slp)
        for hb in range(2):
            for i in range(4):
                A(f"ds_read_b128 v[{PV+16*hb+4*i}:{PV+16*hb+4*i+3}], v{PA} offset:{1024*a + 512*hb + 16*i}")
        for k in range(16): A(f"v_mov_b32 v{AC+k}, 0")
        A("s_waitcnt vmcnt(0) lgkmcnt(0)")
        for t in range(16):
            b = BB + 8*(t % 2)
            for hb in range(2):
                for m in range(4): A(f"v_and_b32 v{b+4*hb+m}, v{PV+16*hb+t}, v{M+m}")
            A("s_nop 0")
            for hb in range(2):
                for tau in range(2):
                    r = F0 + 64*tau + 4*t
                    ac = AC + 8*hb + 4*tau
                    if hb == 1 and tau == 0 and False: A("s_nop 0")
                    A(f"v_mfma_f32_16x16x32_bf16 v[{ac}:{ac+3}], v[{r}:{r+3}], v[{b+4*hb}:{b+4*hb+3}], v[{ac}:{ac+3}]")
        A("s_nop 7\ns_nop 1")
        for k in range(16):
            A(f"v_add_f32_dpp v{RA+k}, v{AC+k}, v{AC+k} row_ror:8 row_mask:0xf bank_mask:0xf")
        for k in range(16):
            hb, tau, rr = k // 8, (k // 4) % 2, k % 4
            A(f"ds_write_b32 v{WW}, v{RA+k} offset:{(2*a+hb)*SWS + tau*512 + rr*32}")
        A("s_mov_b64 exec, 1")
        A(f"ds_add_u32 v6, v7 offset:{cW + 8*a}")
        A(f"ds_add_u32 v6, v7 offset:{cW + 8*a + 4}")
        A("s_mov_b64 exec, -1")
        if a == 1:
            sk2 = newlab("now")
            A(f"s_cmp_lt_u32 s22, {(8 - NP) // 2}")
            A(f"s_cbranch_scc1 {sk2}")
            if wlate: lds_wait(cS + 16 + 4*(wlate - 1), 4, "v6", "v8", "s43", "s46", sleep=slp)
            A("v_and_b32 v8, 8, v0")
            A("v_cmp_ne_u32 vcc, 0, v8")
            A("v_lshlrev_b32 v8, 6, v8")
            A("v_and_b32 v9, 7, v0")
            A("v_lshl_add_u32 v8, v9, 4, v8")
            A("v_lshl_add_u32 v8, v4, 7, v8")
            for k in range(4): A(f"v_cndmask_b32 v{AC+k}, v{RA+8+k}, v{RA+12+k}, vcc")
            put_tags(AC)
            A("s_lshl_b32 s36, s21, 16")
            A("s_lshl_b32 s37, s20, 12")
            A("s_add_u32 s36, s36, s37")
            A("s_lshl_b32 s37, s22, 10")
            A("s_add_u32 s36, s36, s37")
            A(f"s_add_u32 s36, s36, {WS_W}")
            if NP % 2:
                A(f"s_cmp_eq_u32 s22, {(8 - NP) // 2}")
                A("s_cselect_b64 exec, vcc, -1")
            if not nowst: A(f"buffer_store_dwordx4 v[{AC}:{AC+3}], v8, s[32:35], s36 offen {stpol}")
            A("s_mov_b64 exec, -1")
            A(f"{sk2}:")

    epass(0)
    if stamps > 5: stamp(5)
    pw(0)
    if stamps > 6: stamp(6)
    epass(1)
    pw(1)
    if stamps > 7: stamp(7)
    if noo: A("s_endpgm")
    A("s_cmp_eq_u32 s22, 3")
    A("s_cbranch_scc1 L_final")
    A("s_cmp_lt_u32 s22, 2")
    A("s_cbranch_scc1 L_disp")
    A("v_lshrrev_b32 v8, 5, v0")
    A("v_and_b32 v9, 31, v0")
    A("v_lshlrev_b32 v9, 4, v9")
    A("v_lshl_add_u32 v9, v8, 11, v9")
    A(f"v_add_u32 v15, {OB0}, v9")
    A("s_lshl_b32 s38, s20, 11")
    A("s_add_u32 s37, s61, s38")
    def osum(r, off):
        for w in range(4): A(f"ds_read_b128 v[{r+4*w}:{r+4*w+3}], v15 offset:{off + 512*w}")
    def oadd(r):
        A("s_waitcnt lgkmcnt(0)")
        for k in range(4):
            A(f"v_add_f32 v{r+k}, v{r+k}, v{r+4+k}")
            A(f"v_add_f32 v{r+8+k}, v{r+8+k}, v{r+12+k}")
        for k in range(4): A(f"v_add_f32 v{r+k}, v{r+k}, v{r+8+k}")
        put_tags(r)
    if not eo:
        for a in range(2):
            lds_wait(cS + 16 + 8*a, 4, "v6", "v8", "s43", "s46", sleep=slp)
            lds_wait(cS + 16 + 8*a + 4, 4, "v6", "v8", "s43", "s46", sleep=(oslp if a else slp))
            r = G + 16*a
            osum(r, 4096*a)
            if a == 1:
                A(f"buffer_store_dwordx4 v[{G}:{G+3}], v2, s[32:35], s37 offen {stpol}")
            oadd(r)
        A(f"buffer_store_dwordx4 v[{G+16}:{G+19}], v2, s[32:35], s37 offen offset:1024 {stpol}")
    else:
        for h in range(eo): lds_wait(cS + 16 + 4*h, 4, "v6", "v8", "s43", "s46", sleep=slp)
        osum(G, 0)
        oadd(G)
        A(f"buffer_store_dwordx4 v[{G}:{G+3}], v2, s[32:35], s37 offen {stpol}")
        if eo == 3:
            A("s_mov_b32 exec_hi, 0")
            osum(G+16, 4096)
            oadd(G+16)
            A(f"buffer_store_dwordx4 v[{G+16}:{G+19}], v2, s[32:35], s37 offen offset:1024 {stpol}")
            A("s_mov_b64 exec, -1")
        else:
            lds_wait(cS + 24, 4, "v6", "v8", "s43", "s46", sleep=slp)
        lds_wait(cS + 28, 4, "v6", "v8", "s43", "s46", sleep=oslp)
        if eo == 3: A("s_mov_b32 exec_lo, 0")
        osum(G+16, 4096)
        oadd(G+16)
        A(f"buffer_store_dwordx4 v[{G+16}:{G+19}], v2, s[32:35], s37 offen offset:1024 {stpol}")
        A("s_mov_b64 exec, -1")
    if stamps >= 15:
        A("s_memrealtime s[70:71]\ns_waitcnt vmcnt(0)\ns_memrealtime s[72:73]\ns_waitcnt lgkmcnt(0)")
        A("s_add_u32 s90, s18, 0x20000000\ns_addc_u32 s91, s19, 0")
        A("s_lshl_b32 s37, s2, 7\nv_mov_b32 v9, s37")
        A("v_mov_b32 v12, s70\nv_mov_b32 v13, s71\nv_mov_b32 v14, s72\nv_mov_b32 v15, s73\ns_mov_b64 exec, 1")
        A("global_store_dwordx4 v9, v[12:15], s[90:91] offset:96")
    A("s_endpgm")
    A("L_disp:")
    A("s_lshl_b32 s36, s21, 24")
    A("s_xor_b32 s37, s69, 3")
    A("s_lshl_b32 s37, s37, 22")
    A("s_add_u32 s36, s36, s37")
    A("s_add_u32 s36, s36, 1")
    scat("s37", "s20", MB, 0, "s38", add="s36")
    A(f"v_mov_b32 v3, {DS0}")
    A("s_mov_b64 exec, 1")
    for k in range(NL):
        tile = 8 - NP - NL + k
        A(f"s_add_u32 s38, s37, {scat_c(tile, TB, 0)}")
        A("v_mov_b32 v8, s38")
        A(f"v_mov_b32 v9, {SW0 + 3*SWS + tile*512}")
        A(f"ds_write_b64 v3, v[8:9] offset:{8*k}")
    A("s_mov_b64 exec, -1")
    A("s_lshl_b32 s38, s22, 3")
    A(f"s_add_u32 s38, s38, {8*NL - 8}")
    A("v_add_u32 v3, s38, v3")
    A("v_and_b32 v14, 0x1ff, v2")
    A("v_bfe_u32 v8, v0, 3, 2")
    A("v_and_b32 v9, 7, v0")
    A("v_lshlrev_b32 v15, 7, v8")
    A("v_lshl_add_u32 v15, v9, 2, v15")
    A("s_lshl_b32 s39, s21, 16")
    A(f"s_add_u32 s39, s39, {WS_W + (8 - NP)*512}")
    A("s_lshl_b32 s44, s22, 2")
    A(f"s_add_u32 s44, s44, {4*(NL-1) + trig}")
    A("s_lshl_b32 s45, s22, 9")
    A("s_add_u32 s45, s45, 512")
    A("L_dl:")
    lds_wait(cQ, "s44", "v6", "v8", "s43", "s46", sleep=dslp)
    lds_wait(0, 1, "v3", "v8", "s43", "s46", sleep=dslp)
    A("s_cmp_eq_u32 s43, -1")
    A("s_cbranch_scc1 L_dexit")
    A("v_mov_b32 v8, 1")
    A("s_mov_b64 exec, 1")
    A("buffer_atomic_add v8, off, s[32:35], s68 sc0")
    A("s_mov_b64 exec, -1")
    A("s_waitcnt vmcnt(0)")
    A("v_readfirstlane_b32 s43, v8")
    A("s_nop 0")
    A(f"s_cmp_ge_u32 s43, {16*NP}")
    A("s_cbranch_scc1 L_dend")
    A("s_and_b32 s37, s43, 15")
    A("s_lshr_b32 s38, s43, 4")
    A("s_lshl_b32 s42, s37, 12")
    A("s_lshl_b32 s41, s38, 9")
    A("s_add_u32 s42, s42, s41")
    A("s_add_u32 s42, s42, s39")
    if not nowld: A(f"buffer_load_dwordx4 v[{G}:{G+3}], v14, s[32:35], s42 offen {ldpol}")
    A(f"s_add_u32 s38, s38, {8 - NP}")
    scat("s41", "s37", MB, 0, "s43", add="s36")
    scat("s37", "s38", TB, 0, "s43", add="s41")
    A("v_mov_b32 v8, s37")
    A("ds_write_b32 v3, v8 offset:8")
    A(f"s_mov_b32 s46, {0 if nowst else 0x8000}")
    A("L_dw:")
    A("s_waitcnt vmcnt(0)")
    check_tags(G, 8, 9, "vcc")
    A("s_cmp_eq_u64 vcc, 0")
    A("s_cbranch_scc1 L_dw_ok")
    A("s_sub_u32 s46, s46, 1")
    A("s_cbranch_scc1 L_dw_ok")
    A(f"s_sleep {gslp}")
    A(f"buffer_load_dwordx4 v[{G}:{G+3}], v14, s[32:35], s42 offen {ldpol}")
    A("s_branch L_dw")
    A("L_dw_ok:")
    A("v_add_u32 v9, s45, v15")
    for k in range(4):
        A(f"v_and_b32 v{G+k}, s57, v{G+k}")
        A(f"ds_write_b32 v9, v{G+k} offset:{32*k}")
    A("v_mov_b32 v8, s45")
    A("ds_write_b32 v3, v8 offset:12")
    A("v_add_u32 v3, 16, v3")
    A("s_add_u32 s44, s44, 8")
    A("s_add_u32 s45, s45, 1024")
    A("s_branch L_dl")
    A("L_dend:")
    A("v_mov_b32 v8, -1")
    A("ds_write_b32 v3, v8 offset:8")
    A("L_dexit:")
    A("s_cmp_lg_u32 s22, 0")
    A("s_cbranch_scc1 L_done")
    A("L_final:")
    A("v_lshrrev_b32 v8, 2, v0")
    A("v_and_b32 v9, 3, v0")
    A("v_lshlrev_b32 v15, 3, v9")
    A("v_lshlrev_b32 v9, 4, v9")
    A("v_lshl_add_u32 v3, v8, 11, v9")
    A("s_and_b32 s39, s22, 1")
    A("s_lshl_b32 s38, s20, 1")
    A("s_add_u32 s39, s39, s38")
    A("s_lshl_b32 s38, s39, 6")
    A("s_add_u32 s37, s61, s38")
    lds_wait(cS + 28, 4, "v6", "v8", "s43", "s46", sleep=oslp)
    A("s_mov_b64 s[62:63], -1")
    A("s_mov_b32 s46, 0x8000")
    A("L_fpoll:")
    A("s_mov_b64 exec, s[62:63]")
    A(f"buffer_load_dwordx4 v[{G}:{G+3}], v3, s[32:35], s37 offen {ldpol}")
    A("s_mov_b64 exec, -1")
    A("s_waitcnt vmcnt(0)")
    check_tags(G, 8, 9, "s[62:63]")
    A("s_nop 0")
    A("s_bcnt1_i32_b64 s43, s[62:63]")
    A("s_cbranch_scc0 L_fdone")
    A("s_sub_u32 s46, s46, 1")
    A("s_cbranch_scc1 L_fdone")
    A(f"s_cmp_le_u32 s43, {4*fastx}")
    A("s_cbranch_scc1 L_ffast")
    if fslp: A(f"s_sleep {fslp}")
    A("s_branch L_fpoll")
    A("L_ffast:")
    A("s_mov_b64 exec, s[62:63]")
    A(f"buffer_load_dwordx4 v[{G+8}:{G+11}], v3, s[32:35], s37 offen {ldpol}")
    A(f"s_sleep {fdelta}")
    A(f"buffer_load_dwordx4 v[{G+12}:{G+15}], v3, s[32:35], s37 offen {ldpol}")
    A("L_ff:")
    for j in range(2):
        r = G + 8 + 4*j
        A("s_mov_b64 exec, -1")
        A("s_waitcnt vmcnt(1)")
        check_tags(r, 8, 9, "vcc")
        A("s_andn2_b64 exec, s[62:63], vcc")
        for k in range(4): A(f"v_mov_b32 v{G+k}, v{r+k}")
        A("s_and_b64 s[62:63], s[62:63], vcc")
        A("s_cbranch_scc0 L_fdone")
        A("s_mov_b64 exec, s[62:63]")
        A(f"buffer_load_dwordx4 v[{r}:{r+3}], v3, s[32:35], s37 offen {ldpol}")
    A("s_sub_u32 s46, s46, 1")
    A("s_cbranch_scc0 L_ff")
    A("L_fdone:")
    A("s_mov_b64 exec, -1")
    if stamps >= 15: A("s_memrealtime s[86:87]")
    for k in range(4): A(f"v_and_b32 v{G+k}, s57, v{G+k}")
    for rot in (4, 8):
        A("s_nop 1")
        for k in range(4): A(f"v_add_f32_dpp v{G+k}, v{G+k}, v{G+k} row_ror:{rot} row_mask:0xf bank_mask:0xf")
    for sw in ("16", "32"):
        for k in range(4): A(f"v_mov_b32 v{G+4+k}, v{G+k}")
        A("s_nop 1")
        for k in range(4): A(f"v_permlane{sw}_swap_b32 v{G+k}, v{G+4+k}")
        for k in range(4): A(f"v_add_f32 v{G+k}, v{G+k}, v{G+4+k}")
    A(f"v_cvt_pk_bf16_f32 v{G}, v{G}, v{G+1}")
    A(f"v_cvt_pk_bf16_f32 v{G+1}, v{G+2}, v{G+3}")
    A("s_lshl_b32 s36, s21, 10")
    A("s_lshl_b32 s38, s39, 5")
    A("s_lshl_b32 s43, s69, 8")
    A("s_xor_b32 s38, s38, s43")
    A("s_add_u32 s36, s36, s38")
    A("s_mov_b64 exec, 15")
    A(f"buffer_store_dwordx2 v[{G}:{G+1}], v15, s[52:55], s36 offen {opol}")
    A("s_cmp_lg_u32 s39, 0")
    A("s_cbranch_scc1 L_fend")
    A("v_mov_b32 v8, s56")
    A("s_mov_b64 exec, 1")
    A(f"buffer_store_dword v8, off, s[32:35], s47 {eppol}")
    A("L_fend:")
    if hold:
        A("L_hold:\ns_memrealtime s[86:87]\ns_waitcnt lgkmcnt(0)\ns_sub_u32 s86, s86, s70")
        A(f"s_cmp_lt_u32 s86, {hold*100}\ns_cbranch_scc1 L_hold\ns_endpgm")
    if stamps > 3:
        A("s_mov_b64 exec, -1")
        A("s_cmp_lg_u32 s22, 3\ns_cbranch_scc1 L_done")
        A("s_waitcnt vmcnt(0)")
        stamp(3)
        if dbgst:
            dbg_store([(6, "s76", 1), (7, "s76", 0)])
            A("s_endpgm")
        stamp_store(range(3, min(stamps, 8)))
        if stamps >= 15:
            A("v_mov_b32 v10, s86\nv_mov_b32 v11, s87\ns_mov_b64 exec, 1")
            A("global_store_dwordx2 v9, v[10:11], s[90:91] offset:112")
    A("L_done:")
    A("s_endpgm")
    A(f""".section .rodata,"a"
.p2align 6
.amdhsa_kernel {KN}
  .amdhsa_next_free_vgpr 256
  .amdhsa_next_free_sgpr 100
  .amdhsa_accum_offset 256
  .amdhsa_group_segment_fixed_size 0
  .amdhsa_kernarg_size 64
  .amdhsa_user_sgpr_count 2
  .amdhsa_user_sgpr_kernarg_segment_ptr 1
  .amdhsa_system_sgpr_workgroup_id_x 1
  .amdhsa_float_denorm_mode_32 3
.end_amdhsa_kernel""")
    return "\n".join(L) + "\n"

if __name__ == "__main__":
    for spec in sys.argv[1:]:
        path, _, opts = spec.partition(":")
        kw = {}
        for p in filter(None, opts.split(",")):
            k, v = p.split("=")
            kw[k] = int(v) if v.lstrip("-").isdigit() else v
        open(path, "w").write(gen(**kw))
        print(path)
```

```python
import sys
KN = "standalone__low_rank_proj_linformer__decode_kernel"

HEADER = """; Kernarg layout for this problem (64 bytes, ptrs only, base s[0:1]):
"""

DOC = """
; ---------------------------------------------------------------------------------------------
; ---------------------------------------------------------------------------------------------"""

def gen(D=5, DV=6, stamps=0, epol="nt", fpol="nt", hthr=2, prio=0, slp=16, oslp=1, gslp=8, fslp=0,
        stpol="sc1", ldpol="sc1", kvpol="nt", qpol="", nosst=0, nosg=0, noo=0, noef=0, tlb=0, tlbat=2, fthr=None, tAR=24, tAO=27, tBR=36, tBO=40, npoll=4, NP=3, NL=2, dslp=1, trig=4, nowst=0, nowld=0, fastx=16, fdelta=8, noe=0, nof=0, etouch=0, ftouch=0, tb='15.19.20', mb='16.17.18.21', f4=1, e4=0, pf=1, pfpol='', pfw=1, dbgst=0, hold=0, opol='', eppol='', wsoff=0, hx=3, hxs=0, eo=3, wlate=3, nopst=0, nopld=0, sstpol=None, gc=0, pfsplit=0, ealt=0, falt=0, stg=0, sat=0, ub='13.12.14', wb='11.10', US=15, spin=0, pullu=1, sw=1):
    UB = [int(x) for x in str(ub).split('.')]; WB = [int(x) for x in str(wb).split('.')]
    assert sorted(UB + WB) == list(range(10, 15))
    sstpol = stpol if sstpol is None else sstpol
    TB = [int(x) for x in str(tb).split('.')]; MB = [int(x) for x in str(mb).split('.')]
    assert sorted(TB + MB) == list(range(15, 22))
    fthr = fthr or hthr
    DV = DV or D
    L = []
    A = L.append
    ESTR = 2064
    SW0 = 64 * ESTR
    SWS = 4224
    PSTR = 2112
    OB0 = SW0 + 4 * SWS
    SC0 = OB0 + 8192
    PD0 = SC0 + 1024
    CN0 = PD0 + 2048
    DS0 = CN0 + 128
    NDESC = NL + 16*NP + 1
    LDS = DS0 + 896
    assert NDESC * 8 <= 896 and 1 <= NL and NP + NL <= 6 and NP <= 4
    cS, cE, cP, cW, cT, cQ, cN = 0, 32, 48, 64, 80, 84, 88
    WS_EP = 0
    KS = 1 << (US + 4)
    WS_SC = 1 * KS
    WS_P = 3 * KS
    WS_C = 1 << 12
    WS_W = 4 * KS
    WS_O = 5 * KS
    lab = [0]
    def newlab(p):
        lab[0] += 1
        return f"L_{p}{lab[0]}"
    def lds_wait(off, target, vaddr, vt, st, sc, sleep=2):
        l = newlab("w"); d = newlab("wd")
        A(f"s_mov_b32 {sc}, 0x40000")
        A(f"{l}:")
        A(f"ds_read_b32 {vt}, {vaddr} offset:{off}")
        A("s_waitcnt lgkmcnt(0)")
        A(f"v_readfirstlane_b32 {st}, {vt}")
        A("s_nop 0")
        A(f"s_cmp_ge_u32 {st}, {target}")
        A(f"s_cbranch_scc1 {d}")
        A(f"s_sub_u32 {sc}, {sc}, 1")
        A(f"s_cbranch_scc1 {d}")
        A(f"s_sleep {sleep}")
        A(f"s_branch {l}")
        A(f"{d}:")
    def lds_inc(off, vaddr, vone):
        A("s_mov_b64 exec, 1")
        A(f"ds_add_u32 {vaddr}, {vone} offset:{off}")
        A("s_mov_b64 exec, -1")
    def scat(dst, src, bits, sh, tmp, add=None):
        runs = []
        for i, b in enumerate(bits):
            if runs and runs[-1][1] + runs[-1][2] == b and runs[-1][0] + runs[-1][2] == i: runs[-1][2] += 1
            else: runs.append([i, b, 1])
        cur = add
        for i, b, n in runs:
            t = tmp if cur is not None else dst
            if len(runs) == 1: A(f"s_lshl_b32 {t}, {src}, {b + sh}")
            else:
                A(f"s_bfe_u32 {t}, {src}, {(n << 16) | i}")
                A(f"s_lshl_b32 {t}, {t}, {b + sh}")
            if cur is not None: A(f"s_add_u32 {dst}, {cur}, {t}")
            cur = dst
    scat_c = lambda v, bits, sh: sum(((v >> i) & 1) << (b + sh) for i, b in enumerate(bits))
    def vscat(dst, src, first, bits, sh, tmp, add):
        cur = add
        for i, b in enumerate(bits):
            A(f"v_bfe_u32 {tmp}, {src}, {first + i}, 1")
            A(f"v_lshl_add_u32 {dst}, {tmp}, {b + sh}, {cur}")
            cur = dst
    TG = 20
    def put_tags(r):
        for k in range(4): A(f"v_and_or_b32 v{r+k}, v{r+k}, s57, v{TG+k}")
    def check_tags(r, t0, t1, dst):
        A(f"v_perm_b32 v{t0}, v{r+1}, v{r}, s58")
        A(f"v_perm_b32 v{t1}, v{r+3}, v{r+2}, s59")
        A(f"v_or_b32 v{t0}, v{t0}, v{t1}")
        A(f"v_cmp_ne_u32 {dst}, s56, v{t0}")

    def stamp(i):
        if stamps and i < stamps:
            A(f"s_memrealtime s[{70+2*i}:{71+2*i}]")
    def dbg_store(pairs):
        A("s_waitcnt lgkmcnt(0)")
        A("s_mov_b64 exec, 1")
        for w, sr, inv in pairs:
            A(f"s_and_b32 s43, {sr}, 0xffffff")
            if inv: A("s_xor_b32 s43, s43, 0xffffff")
            A("v_mov_b32 v10, s43")
            A(f"v_mov_b32 v9, {4*w}")
            A("global_atomic_umax v9, v10, s[16:17]")
            A("s_nop 1")
        A("s_mov_b64 exec, -1")
    def stamp_store(idx):
        A("s_waitcnt lgkmcnt(0)")
        A("s_add_u32 s90, s18, 0x20000000\ns_addc_u32 s91, s19, 0")
        A("s_lshl_b32 s37, s2, 7\nv_mov_b32 v9, s37")
        for i in idx:
            A(f"v_mov_b32 v10, s{70+2*i}\nv_mov_b32 v11, s{71+2*i}")
            A("s_mov_b64 exec, 1")
            A(f"global_store_dwordx2 v9, v[10:11], s[90:91] offset:{8*i}")
            A("s_mov_b64 exec, -1")
            A("s_nop 1")

    A(HEADER + f"; @launch grid=(256,1,1) block=(512,1,1) lds={LDS}" + DOC)
    A('.amdgcn_target "amdgcn-amd-amdhsa--gfx950"')
    A(".text")
    A(f".globl {KN}\n.p2align 8\n.type {KN},@function\n{KN}:")
    A("s_cmp_ge_u32 s2, 256")
    A("s_cbranch_scc1 L_done")
    A("s_load_dwordx16 s[4:19], s[0:1], 0")
    stamp(0)
    A("v_lshrrev_b32 v1, 6, v0")
    A("v_and_b32 v0, 63, v0")
    A("v_readfirstlane_b32 s3, v1")
    A("s_and_b32 s20, s2, 15")
    A("s_lshr_b32 s21, s2, 4")
    if hx < 4:
        A(f"s_lshr_b32 s69, s21, {hxs}")
        A(f"s_and_b32 s69, s69, {hx}")
    else:
        tab = {4: [0, 2, 1, 3], 5: [0, 3, 1, 2], 6: [0, 1, 3, 2]}[hx]
        A("s_and_b32 s69, s21, 3")
        A("s_lshl_b32 s69, s69, 1")
        A(f"s_lshr_b32 s69, {sum(v << (2*i) for i, v in enumerate(tab))}, s69")
        A("s_and_b32 s69, s69, 3")
    A("v_lshrrev_b32 v4, 4, v0")
    A("v_and_b32 v5, 15, v0")
    A(f"v_mov_b32 v6, {CN0}")
    A("v_mov_b32 v7, 1")
    A("v_lshlrev_b32 v2, 4, v0")
    A("s_cmp_ge_u32 s3, 4")
    A("s_cbranch_scc1 L_helper")

    RING = 16; Q = 48; P = 64; X0, X1, Y, T = 72, 73, 74, 75
    M2 = 76; SA = 77; WA = 78; W = 79; ACC = 80; TM = 88; OA = 96; CA = 97; LP = 98; DA = 99; DV0 = 100
    CU = lambda u: scat_c(u, UB, 0)
    offs = sorted(set(CU(u) // 4096 * 4096 for u in range(8)))
    AREG = {o: (2 if o == 0 else 136 + i) for i, o in enumerate(offs)}
    for o in offs[1:]: A(f"v_add_u32 v{AREG[o]}, {o}, v2")
    A("v_lshlrev_b32 v8, 4, v5")
    A("s_lshl_b32 s36, s21, 24")
    scat("s36", "s20", MB, 0, "s37", add="s36")
    scat("s36", "s3", WB, 0, "s37", add="s36")
    A("s_lshl_b32 s50, s69, 22")
    A("s_add_u32 s50, s50, s36")
    A("s_lshl_b32 s39, s21, 10")
    for h in range(4):
        A(f"s_xor_b32 s{52+h}, s69, {h}")
        A(f"s_lshl_b32 s{52+h}, s{52+h}, 8")
        A(f"s_add_u32 s{52+h}, s{52+h}, s39")
    A("s_waitcnt lgkmcnt(0)")
    A("s_mov_b32 s24, s6\ns_mov_b32 s25, s7\ns_mov_b32 s26, 0x10000000\ns_mov_b32 s27, 0x20000")
    A("s_mov_b32 s32, s4\ns_mov_b32 s33, s5\ns_mov_b32 s34, 16384\ns_mov_b32 s35, 0x20000")
    RINGB = 104
    def kvload(idx, srd, soff, RING=RING):
        s = idx % 8
        A(f"buffer_load_dwordx4 v[{RING+4*s}:{RING+4*s+3}], v{AREG[CU(s) // 4096 * 4096]}, s[{srd}:{srd+3}], {soff} offen offset:{CU(s) % 4096} {kvpol}")
    for h in range(4):
        A(f"buffer_load_dwordx4 v[{Q+4*h}:{Q+4*h+3}], v8, s[32:35], s{52+h} offen {qpol}")
    for u in range(D): kvload(u, 24, "s50")
    A("s_mov_b32 s28, s8\ns_mov_b32 s29, s9\ns_mov_b32 s30, 0x10000000\ns_mov_b32 s31, 0x20000")
    if prio: A(f"s_setprio {prio}")
    A("v_and_b32 v9, 1, v0")
    A("v_sub_u32 v10, 0, v9")
    A(f"v_and_b32 v{M2}, 0xffff0000, v10")
    A(f"v_mul_u32_u24 v{SA}, {PSTR}, v9")
    scat("s37", "s3", WB, -8, "s43")
    vscat("v10", "v0", 2, UB[:2], -8, "v11", "v4")
    A("v_add_u32 v10, s37, v10")
    A(f"v_lshl_add_u32 v{SA}, v10, 1, v{SA}")
    A(f"v_add_u32 v{SA}, {SW0}, v{SA}")
    vscat("v10", "v0", 0, UB, -8, "v11", "v4")
    A(f"v_lshlrev_b32 v{LP}, 2, v10")
    A("v_add_u32 v10, s37, v10")
    A(f"v_lshlrev_b32 v{WA}, 2, v10")
    A(f"v_add_u32 v{WA}, {SW0}, v{WA}")
    A("v_lshlrev_b32 v10, 5, v5")
    A("v_lshl_add_u32 v10, v4, 3, v10")
    A("s_lshl_b32 s37, s3, 9")
    A("v_add_u32 v10, s37, v10")
    A(f"v_add_u32 v{OA}, {OB0}, v10")
    for k in range(8): A(f"v_mov_b32 v{ACC+k}, 0")
    A(f"v_mov_b32 v{CA}, v6")
    if spin: A("s_mov_b32 s80, 0\ns_mov_b32 s81, 0\ns_mov_b32 s82, 0")
    if stg: A("s_mov_b32 s88, 0\nv_mov_b32 v102, 0")
    A("s_cmp_eq_u32 s3, 0")
    A("s_cselect_b32 s48, 1, 0")
    A("s_mov_b32 s40, 0xffff0000")
    A("s_barrier")
    if dbgst: A(f"s_waitcnt vmcnt({D-1})\ns_memrealtime s[84:85]")
    A("s_mov_b32 s38, 0")
    A("s_mov_b32 s41, s50")

    def next_off():
        A("s_add_u32 s43, s38, 1")
        A("s_lshr_b32 s44, s43, 3")
        A("s_and_b32 s43, s43, 7")
        A("s_xor_b32 s44, s44, s69")
        A("s_lshl_b32 s44, s44, 22")
        A("s_add_u32 s42, s36, s44")
        scat("s42", "s43", TB, 0, "s44", add="s42")
    def tick():
        l = newlab("nt")
        A("s_cmp_eq_u32 s48, 0")
        A(f"s_cbranch_scc1 {l}")
        lds_inc(cT, "v6", "v7")
        A(f"{l}:")
    def stage_done():
        if stg:
            A("s_memrealtime s[86:87]\ns_waitcnt lgkmcnt(0)\ns_mov_b32 m0, s88\ns_nop 0\nv_writelane_b32 v102, s86, m0\ns_add_u32 s88, s88, 1")
        lds_inc(cS, f"v{CA}", "v7")
        A(f"v_add_u32 v{CA}, 4, v{CA}")

    def kstep(cur_srd, nxt_srd, nxt_off, Din, Dout):
        issued = Din
        for u in range(8):
            A(f"s_waitcnt vmcnt({issued - u - 1})")
            want = u + 1 + (Din if u < 7 else Dout) if Din == Dout else u + 1 + Din + (Dout - Din) * (u + 1) // 8
            while issued < want:
                if issued < 8: kvload(issued, cur_srd, "s41")
                else: kvload(issued, nxt_srd, nxt_off)
                issued += 1
            r = RING + 4*u
            A(f"v_dot2_f32_bf16 v{P+u}, v{r}, v{Q}, 0")
            for m in range(1, 4):
                A(f"v_dot2_f32_bf16 v{P+u}, v{r+m}, v{Q+m}, v{P+u}")
            if u % 4 == 3:
                e = u // 4; p = P + 4*e
                A(f"v_add_f32_dpp v{X0}, v{p}, v{p} row_ror:8 row_mask:0xf bank_mask:0x3")
                A(f"v_add_f32_dpp v{X1}, v{p+1}, v{p+1} row_ror:8 row_mask:0xf bank_mask:0x3")
                A("s_nop 0")
                A(f"v_add_f32_dpp v{X0}, v{p+2}, v{p+2} row_ror:8 row_mask:0xf bank_mask:0xc")
                A(f"v_add_f32_dpp v{X1}, v{p+3}, v{p+3} row_ror:8 row_mask:0xf bank_mask:0xc")
                A(f"s_nop 0")
                A(f"v_add_f32_dpp v{Y}, v{X0}, v{X0} row_half_mirror row_mask:0xf bank_mask:0x5")
                A("s_nop 1")
                A(f"v_add_f32_dpp v{Y}, v{X1}, v{X1} row_half_mirror row_mask:0xf bank_mask:0xa")
                A("s_nop 1")
                A(f"v_add_f32_dpp v{Y}, v{Y}, v{Y} quad_perm:[1,0,3,2] row_mask:0xf bank_mask:0xf")
                A("s_nop 1")
                A(f"v_add_f32_dpp v{Y}, v{Y}, v{Y} quad_perm:[2,3,0,1] row_mask:0xf bank_mask:0xf")
                A(f"v_and_b32 v{T}, v{Y}, v{M2}")
                A(f"v_sub_f32 v{T}, v{Y}, v{T}")
                A(f"ds_write_b16_d16_hi v{SA}, v{T} offset:{e << (UB[2] - 7)}")
        assert issued == 8 + Dout
        A(f"v_add_u32 v{SA}, 256, v{SA}")

    A("L_kloop:")
    next_off()
    kstep(24, 24, "s42", D, D)
    tick()
    A("s_mov_b32 s41, s42")
    A("s_add_u32 s38, s38, 1")
    A("s_and_b32 s43, s38, 7")
    A("s_cbranch_scc1 L_knohead")
    stage_done()
    A(f"v_add_u32 v{SA}, {SWS - 2048}, v{SA}")
    for k in range(12): A(f"v_mov_b32 v{Q+k}, v{Q+4+k}")
    A("L_knohead:")
    A("s_cmp_lt_u32 s38, 31")
    A("s_cbranch_scc1 L_kloop")
    kstep(24, 28, "s50", D, DV)
    tick()
    stage_done()
    stamp(1)
    def vproc(u, RING=RING):
        r = RING + 4*u
        for m in range(4):
            A(f"v_lshlrev_b32 v{TM+2*m}, 16, v{r+m}")
            A(f"v_and_b32 v{TM+2*m+1}, s40, v{r+m}")
        for k in range(8):
            A(f"v_fmac_f32_dpp v{ACC+k}, v{W}, v{TM+k} row_newbcast:{u} row_mask:0xf bank_mask:0xf")
    def vpart(u0, u1, drain=False, pull=False):
        for u in range(u0, u1):
            if drain:
                A(f"s_waitcnt vmcnt({7-u})")
            else:
                A(f"s_waitcnt vmcnt({DV-1})")
                if u + DV < 8: kvload(u + DV, 28, "s41")
                else: kvload(u + DV, 28, "s42")
            if u == 0: A("s_waitcnt lgkmcnt(0)")
            if pull and u == (u1 - 1 if pullu is None else pullu):
                A("s_mov_b64 exec, 1")
                A(f"ds_add_rtn_u32 v{DV0}, v6, v7 offset:{cQ}")
                A("s_mov_b64 exec, -1")
            vproc(u)
    def vstep():
        A(f"ds_read_b32 v{W}, v{WA}")
        vpart(0, 8)
        A(f"v_add_u32 v{WA}, 512, v{WA}")
    def vhead_end():
        A("s_nop 1")
        for k in range(4): A(f"v_permlane32_swap_b32 v{ACC+k}, v{ACC+k+4}")
        for k in range(4): A(f"v_add_f32 v{ACC+k}, v{ACC+k}, v{ACC+k+4}")
        A("s_nop 0")
        for k in range(2): A(f"v_permlane16_swap_b32 v{ACC+k}, v{ACC+k+2}")
        for k in range(2): A(f"v_add_f32 v{TM+k}, v{ACC+k}, v{ACC+k+2}")
        A(f"ds_write_b64 v{OA}, v[{TM}:{TM+1}]")
        stage_done()
    A("s_mov_b32 s38, 0")
    A("s_mov_b32 s41, s50")
    A("L_vhead:")
    lds_wait(cW - 16, 4, f"v{CA}", f"v{T}", "s43", "s46")
    A("L_vloop:")
    next_off()
    vstep()
    tick()
    A("s_mov_b32 s41, s42")
    A("s_add_u32 s38, s38, 1")
    A(f"s_cmp_eq_u32 s38, {31 - NP - NL}")
    A("s_cbranch_scc1 L_dyn")
    A("s_and_b32 s43, s38, 7")
    A("s_cbranch_scc1 L_vloop")
    vhead_end()
    for k in range(8): A(f"v_mov_b32 v{ACC+k}, 0")
    A(f"v_add_u32 v{WA}, {SWS - 4096}, v{WA}")
    A(f"v_add_u32 v{OA}, 2048, v{OA}")
    A("s_branch L_vhead")
    def getdesc(n, drain):
        A("s_waitcnt lgkmcnt(0)")
        A(f"v_readfirstlane_b32 s43, v{DV0}")
        A("s_mov_b32 s46, 0x40000")
        A("s_and_b32 s45, s43, 3")
        A("s_lshr_b32 s43, s43, 2")
        A("s_lshl_b32 s43, s43, 3")
        A(f"s_add_u32 s43, s43, {DS0}")
        A(f"v_mov_b32 v{DA}, s43")
        A(f"L_dq{n}:")
        A(f"ds_read_b32 v{DV0}, v{DA}")
        A("s_waitcnt lgkmcnt(0)")
        A(f"v_readfirstlane_b32 s43, v{DV0}")
        A("s_nop 0")
        A("s_cmp_lg_u32 s43, 0")
        A(f"s_cbranch_scc1 L_dq_ok{n}")
        A("s_sub_u32 s46, s46, 1")
        A(f"s_cbranch_scc1 {drain}")
        A("s_sleep 1")
        A(f"s_branch L_dq{n}")
        A(f"L_dq_ok{n}:")
        if spin: A("s_sub_u32 s44, 0x40000, s46\ns_add_u32 s80, s80, s44\ns_add_u32 s82, s82, 1")
        A("s_cmp_eq_u32 s43, -1")
        A(f"s_cbranch_scc1 {drain}")
        scat("s42", "s45", WB, 0, "s44", add="s43")
        A("s_sub_u32 s42, s42, 1")
    def getw():
        lds_wait(4, 1, f"v{DA}", f"v{DV0}", "s43", "s46", sleep=1)
        if spin: A("s_sub_u32 s44, 0x40000, s46\ns_add_u32 s81, s81, s44")
        scat("s43", "s45", WB, -6, "s44", add="s43")
        A(f"v_add_u32 v{WA}, s43, v{LP}")
    if sw:
        WG = 104
        A("L_dyn:")
        A(f"ds_read_b32 v{DV0}, v6 offset:{cN}")
        A("s_mov_b32 s64, s18\ns_mov_b32 s65, s19\ns_mov_b32 s66, 0x40000000\ns_mov_b32 s67, 0x20000")
        if wsoff: A(f"s_add_u32 s64, s64, {wsoff << 20}\ns_addc_u32 s65, s65, 0\ns_mov_b32 s66, {(1024 - wsoff) << 20}")
        A("s_mov_b32 s57, 0xffffff00\ns_mov_b32 s58, 0x0c0c0400\ns_mov_b32 s59, 0x04000c0c")
        A("s_mov_b32 s60, 0xffff0000\ns_mov_b32 s61, 0xffff0000\ns_mov_b32 s62, 0\ns_mov_b32 s63, -1")
        A(f"v_and_b32 v{WG+4}, 7, v0")
        A(f"v_lshlrev_b32 v{WG+4}, 4, v{WG+4}")
        A("s_waitcnt lgkmcnt(0)")
        A(f"v_readfirstlane_b32 s56, v{DV0}")
        def part1(pooled):
            for u in range(8 - DV):
                A(f"s_waitcnt vmcnt({DV-1})")
                kvload(u + DV, 28, "s41")
                if u == 0 and not pooled: A("s_waitcnt lgkmcnt(0)")
                if u == 0 and pooled:
                    A("s_mov_b32 s46, 0x8000")
                    A("L_wchk:")
                    check_tags(WG, WG+5, WG+6, "vcc")
                    A(f"v_cndmask_b32 v{WG+5}, v{WG}, v{WG+1}, s[60:61]")
                    A(f"v_cndmask_b32 v{WG+6}, v{WG+2}, v{WG+3}, s[60:61]")
                    if not nowst:
                        A("s_cmp_lg_u64 vcc, 0")
                        A("s_cbranch_scc1 L_wretry")
                    A("L_wok:")
                    A(f"v_cndmask_b32 v{W}, v{WG+5}, v{WG+6}, s[62:63]")
                    A(f"v_and_b32 v{W}, s57, v{W}")
                if u == pullu:
                    A("s_mov_b64 exec, 1")
                    A(f"ds_add_rtn_u32 v{DV0}, v6, v7 offset:{cQ}")
                    A("s_mov_b64 exec, -1")
                vproc(u)
        A("L_dyn_own:")
        A(f"ds_read_b32 v{W}, v{WA}")
        part1(False)
        A("L_dyn_next:")
        A("s_waitcnt lgkmcnt(0)")
        A(f"v_readfirstlane_b32 s43, v{DV0}")
        A("s_mov_b32 s46, 0x40000")
        A("s_and_b32 s45, s43, 3")
        A("s_lshr_b32 s43, s43, 2")
        A("s_lshl_b32 s43, s43, 3")
        A(f"s_add_u32 s43, s43, {DS0}")
        A(f"v_mov_b32 v{DA}, s43")
        A("L_dq:")
        A(f"ds_read_b64 v[{DV0}:{DV0+1}], v{DA}")
        A("s_waitcnt lgkmcnt(0)")
        A(f"v_readfirstlane_b32 s43, v{DV0}")
        A(f"v_readfirstlane_b32 s51, v{DV0+1}")
        A("s_cmp_lg_u32 s43, 0")
        A("s_cbranch_scc1 L_dq_ok")
        A("s_sub_u32 s46, s46, 1")
        A("s_cbranch_scc1 L_drain")
        A("s_sleep 1")
        A("s_branch L_dq")
        A("L_dq_ok:")
        if spin: A("s_sub_u32 s44, 0x40000, s46\ns_add_u32 s80, s80, s44\ns_add_u32 s82, s82, 1")
        A("s_cmp_eq_u32 s43, -1")
        A("s_cbranch_scc1 L_drain")
        scat("s42", "s45", WB, 0, "s44", add="s43")
        A("s_sub_u32 s42, s42, 1")
        A("s_bitcmp1_b32 s51, 31")
        A("s_cbranch_scc1 L_dyn_pool")
        vpart(8 - DV, 8)
        scat("s43", "s45", WB, -6, "s44", add="s51")
        A(f"v_add_u32 v{WA}, s43, v{LP}")
        A("s_mov_b32 s41, s42")
        A("s_branch L_dyn_own")
        A("L_dyn_pool:")
        A("s_bitset0_b32 s51, 31")
        scat("s51", "s45", [7, US], 0, "s44", add="s51")
        for u in range(8 - DV, 8):
            A(f"s_waitcnt vmcnt({DV-1 if (u == 8 - DV or nowld) else DV})")
            if u == 8 - DV and not nowld: A(f"buffer_load_dwordx4 v[{WG}:{WG+3}], v{WG+4}, s[64:67], s51 offen {ldpol}")
            kvload(u + DV, 28, "s42")
            vproc(u)
        A("s_mov_b32 s41, s42")
        part1(True)
        A("s_branch L_dyn_next")
        A("L_wretry:")
        A("s_sub_u32 s46, s46, 1")
        A("s_cbranch_scc1 L_wok")
        A(f"s_sleep {gslp}")
        A(f"buffer_load_dwordx4 v[{WG}:{WG+3}], v{WG+4}, s[64:67], s51 offen {ldpol}")
        A("s_waitcnt vmcnt(0)")
        A("s_branch L_wchk")
        A("L_drain:")
        vpart(8 - DV, 8, drain=True)
        vhead_end()
    elif gc:
        A("L_dyn:")
        for u in range(DV, 8): kvload(u, 28, "s41")
        for n, (X, Yb) in enumerate(((RING, RINGB), (RINGB, RING))):
            A(f"L_dyn{n}:")
            A(f"ds_read_b32 v{W}, v{WA}")
            for u in range(gc):
                A(f"s_waitcnt vmcnt({7-u})")
                if u == 0: A("s_waitcnt lgkmcnt(0)")
                if u == gc - 1:
                    A("s_mov_b64 exec, 1")
                    A(f"ds_add_rtn_u32 v{DV0}, v6, v7 offset:{cQ}")
                    A("s_mov_b64 exec, -1")
                vproc(u, X)
            getdesc(n, f"L_drain{n}")
            for u in range(8): kvload(u, 28, "s42", Yb)
            for u in range(gc, 8):
                A(f"s_waitcnt vmcnt({15-u})")
                vproc(u, X)
            getw()
        A("s_branch L_dyn0")
        for n, X in enumerate((RING, RINGB)):
            A(f"L_drain{n}:")
            for u in range(gc, 8):
                A(f"s_waitcnt vmcnt({7-u})")
                vproc(u, X)
            if n == 0: A("s_branch L_vend")
        A("L_vend:")
        vhead_end()
    else:
        A("L_dyn:")
        A(f"ds_read_b32 v{W}, v{WA}")
        vpart(0, 8 - DV, pull=True)
        getdesc(0, "L_drain")
        vpart(8 - DV, 8)
        getw()
        A("s_mov_b32 s41, s42")
        A("s_branch L_dyn")
        A("L_drain:")
        vpart(8 - DV, 8, drain=True)
        vhead_end()
    if stamps:
        stamp(2)
        if stamps >= 12:
            A("s_waitcnt lgkmcnt(0)")
            A("s_add_u32 s90, s18, 0x20000000\ns_addc_u32 s91, s19, 0")
            A("s_lshl_b32 s37, s2, 7\ns_lshl_b32 s38, s3, 3\ns_add_u32 s37, s37, s38\nv_mov_b32 v9, s37")
            A("v_mov_b32 v10, s74\nv_mov_b32 v11, s75\ns_mov_b64 exec, 1")
            A("global_store_dwordx2 v9, v[10:11], s[90:91] offset:64\ns_mov_b64 exec, -1\ns_nop 1")
        A("s_cmp_lg_u32 s3, 0\ns_cbranch_scc1 L_done")
        if dbgst: dbg_store([(0, "s70", 1), (1, "s70", 0), (2, "s72", 1), (3, "s72", 0), (4, "s74", 1), (5, "s74", 0), (8, "s84", 1), (9, "s84", 0)])
        else: stamp_store(range(min(stamps, 3)))
        if stamps == 4:
            A("s_getreg_b32 s43, hwreg(HW_REG_XCC_ID)\nv_mov_b32 v10, s43\ns_mov_b64 exec, 1\nglobal_store_dword v9, v10, s[90:91] offset:32\ns_mov_b64 exec, -1")
        if spin:
            A("v_mov_b32 v12, s80\nv_mov_b32 v13, s81\nv_mov_b32 v14, s82\nv_mov_b32 v15, 0\ns_mov_b64 exec, 1\nglobal_store_dwordx4 v9, v[12:15], s[90:91] offset:96\ns_mov_b64 exec, -1")
        if stg:
            A("v_lshl_add_u32 v9, v0, 2, v9\ns_mov_b64 exec, 0xff\nglobal_store_dword v9, v102, s[90:91] offset:64")
    A("s_endpgm")

    F0 = 128
    EA, SB, PA, WW, M = 10, 11, 12, 13, 16
    TG = 20
    UA, UA2 = 120, 121
    AC = 24
    BB = 40
    RA = 56
    PV = 88
    G = 56
    A("L_helper:")
    A("s_sub_u32 s22, s3, 4")
    A("v_mov_b32 v8, 0")
    A("v_lshl_add_u32 v9, v0, 2, v6")
    for i in range(4): A(f"ds_write_b32 v9, v8 offset:{256*i}")
    A("s_waitcnt lgkmcnt(0)")
    A("s_barrier")
    A("s_mov_b32 s32, s18\ns_mov_b32 s33, s19\ns_mov_b32 s34, 0x40000000\ns_mov_b32 s35, 0x20000")
    if wsoff:
        A(f"s_add_u32 s32, s32, {wsoff << 20}\ns_addc_u32 s33, s33, 0\ns_mov_b32 s34, {(1024 - wsoff) << 20}")
    A("s_lshl_b32 s47, s21, 8")
    A(f"buffer_load_dword v{TG}, off, s[32:35], s47 sc1")
    A(f"s_add_u32 s68, s47, {WS_C}")
    A("s_or_b32 s43, s20, s22")
    A("s_cbranch_scc1 L_noinit")
    A("s_mov_b64 exec, 1")
    A("buffer_store_dword v8, off, s[32:35], s68 sc1")
    A("s_mov_b64 exec, -1")
    A("L_noinit:")
    A("s_mov_b32 s24, s10\ns_mov_b32 s25, s11\ns_mov_b32 s26, 0x200000\ns_mov_b32 s27, 0x20000")
    A("s_mov_b32 s28, s12\ns_mov_b32 s29, s13\ns_mov_b32 s30, 0x200000\ns_mov_b32 s31, 0x20000")
    A("s_mov_b32 s52, s14\ns_mov_b32 s53, s15\ns_mov_b32 s54, 16384\ns_mov_b32 s55, 0x20000")
    A("s_lshl_b32 s36, s22, 19")
    scat("s37", "s20", MB, -7, "s43")
    A("s_add_u32 s36, s36, s37")
    A("v_and_b32 v8, 1, v4")
    A(f"v_lshlrev_b32 v8, {TB[0]-7}, v8")
    A("v_lshrrev_b32 v9, 1, v4")
    A(f"v_lshlrev_b32 v9, {TB[1]-7}, v9")
    A("v_add_u32 v8, v8, v9")
    A("v_lshl_add_u32 v124, v5, 4, v8")
    A(f"v_add_u32 v125, {1 << (TB[2]-7)}, v124")
    A(f"s_mul_i32 s38, s22, {16*ESTR}")
    if tlb:
        A("s_mov_b32 s64, s6\ns_mov_b32 s65, s7\ns_mov_b32 s66, 0x10000000\ns_mov_b32 s67, 0x20000")
        A("s_mov_b32 s92, s8\ns_mov_b32 s93, s9\ns_mov_b32 s94, 0x10000000\ns_mov_b32 s95, 0x20000")
        A("s_lshl_b32 s44, s21, 24\ns_lshl_b32 s45, s20, 18\ns_add_u32 s44, s44, s45\ns_lshl_b32 s45, s22, 22\ns_add_u32 s44, s44, s45")
    XS = 8192 + 16
    if pf:
        A("; pull one row of this member's E and F slices into L2 for all 16 groups (one burst chip-wide)")
        A("s_lshl_b32 s43, s21, 2")
        A("s_add_u32 s43, s43, s22")
        A("s_lshl_b32 s43, s43, 15")
        A("s_add_u32 s43, s43, s37")
        for i, srd in enumerate((24, 28)):
            for hf in range(2):
                if (noe and i == 0) or (nof and i == 1) or (pfsplit and i == 1): continue
                A(f"buffer_load_dwordx4 v[{F0+8*i+4*hf}:{F0+8*i+4*hf+3}], v{124+hf}, s[{srd}:{srd+3}], s43 offen {pfpol}")
        if pfw: A("s_waitcnt vmcnt(0)")
        if pfw > 1: A(f"s_sleep {pfw}")
        A("s_mov_b32 s45, s43")
    if e4:
        A("v_lshlrev_b32 v124, 15, v4")
        A("v_lshl_add_u32 v124, v5, 4, v124")
        A(f"s_mul_i32 s38, s22, {4*XS}")
        for x in range(4):
            for t in range(8):
                A(f"s_add_u32 s43, s36, {x*131072 + scat_c(t, TB, -7)}")
                A(f"s_add_u32 m0, s38, {x*XS + 1024*t}")
                A(f"s_waitcnt vmcnt({hthr-1})")
                if not (noef or noe): A(f"buffer_load_dwordx4 v124, s[24:27], s43 offen {epol} lds")
    for rr in range(0 if e4 else 16):
        if pf and pfsplit == rr + 1:
            for hf in range(2):
                A(f"buffer_load_dwordx4 v[{F0+8+4*hf}:{F0+8+4*hf+3}], v{124+hf}, s[28:31], s45 offen {pfpol}")
        for hf in range(2):
            A(f"s_add_u32 m0, s38, {rr*ESTR + 1024*hf}")
            A(f"s_waitcnt vmcnt({hthr-1 - (1 if ealt and (2*rr+hf) % ealt == 0 else 0)})")
            if not (noef or noe): A(f"buffer_load_dwordx4 v{124+hf}, s[24:27], s36 offen {epol} lds")
        A("s_add_u32 s36, s36, 32768")
    A(f"v_lshlrev_b32 v3, {15 if f4 else 19}, v4")
    A("v_lshl_add_u32 v3, v5, 4, v3")
    A(f"v_add_u32 v126, {1 << (TB[0]-7)}, v3")
    scat("s36", "s22", TB[1:], -7, "s43", add="s37")
    for t in range(16):
        if ftouch and t % ftouch == 0:
            if t == 0:
                A("v_lshlrev_b32 v122, 15, v0")
                A("s_lshl_b32 s44, s22, 19")
                A("v_add_u32 v122, s44, v122")
            A(f"s_mov_b64 exec, {(1 << ftouch) - 1}")
            A("buffer_load_dword v123, v122, s[28:31], s36 offen nt")
            A("s_mov_b64 exec, -1")
        for tau in range(2):
            A(f"s_waitcnt vmcnt({fthr-1 - (1 if falt and (2*t+tau) % falt == 0 else 0)})")
            r = F0 + 64*tau + 4*t
            if not (noef or nof): A(f"buffer_load_dwordx4 v[{r}:{r+3}], v{126 if tau else 3}, s[28:31], s36 offen {fpol}")
        A(f"s_add_u32 s36, s36, {131072 if f4 else 32768}")
    if noef or nof: A("s_waitcnt vmcnt(0)")
    A(f"v_readfirstlane_b32 s56, v{TG}\ns_nop 0")
    A("s_add_u32 s56, s56, 0x01010101")
    for k in range(4):
        A(f"s_bfe_u32 s43, s56, {(8 << 16) | (8*k)}")
        A(f"v_mov_b32 v{TG+k}, s43")
    if sw:
        A("v_mov_b32 v8, s56")
        A(f"ds_write_b32 v6, v8 offset:{cN}")
    A("s_mov_b32 s57, 0xffffff00")
    A("s_mov_b32 s58, 0x0c0c0400")
    A("s_mov_b32 s59, 0x04000c0c")
    if e4:
        A(f"s_mul_i32 s36, s22, {4*XS}")
        A("v_lshrrev_b32 v8, 2, v5")
        A(f"v_mul_u32_u24 v{EA}, {XS}, v8")
        A("v_and_b32 v8, 3, v5")
        A(f"v_lshl_add_u32 v{EA}, v8, 8, v{EA}")
    else:
        A(f"s_mul_i32 s36, s22, {16*ESTR}")
        A(f"v_mul_u32_u24 v{EA}, {ESTR}, v5")
    A(f"v_lshl_add_u32 v{EA}, v4, 4, v{EA}")
    A(f"v_add_u32 v{EA}, s36, v{EA}")
    A("v_and_b32 v8, 1, v0")
    A(f"v_mul_u32_u24 v{SB}, {PSTR}, v8")
    A("v_bfe_u32 v8, v0, 1, 1")
    A(f"v_mul_u32_u24 v8, {SWS}, v8")
    A(f"v_add_u32 v{SB}, v{SB}, v8")
    A(f"v_lshl_add_u32 v{SB}, v4, 4, v{SB}")
    A(f"v_add_u32 v{SB}, {SW0}, v{SB}")
    A("v_bfe_u32 v8, v0, 3, 1")
    A(f"v_lshlrev_b32 v{PA}, 8, v8")
    A(f"v_lshl_add_u32 v{PA}, v4, 6, v{PA}")
    A(f"v_add_u32 v{PA}, {PD0}, v{PA}")
    A("v_and_b32 v8, 7, v0")
    A(f"v_lshlrev_b32 v{WW}, 2, v8")
    A(f"v_lshl_add_u32 v{WW}, v4, 7, v{WW}")
    A("s_lshl_b32 s36, s22, 10")
    A(f"v_add_u32 v{WW}, s36, v{WW}")
    A(f"v_add_u32 v{WW}, {SW0}, v{WW}")
    A("v_and_b32 v9, 1, v0")
    A("v_lshlrev_b32 v9, 4, v9")
    A("v_mov_b32 v14, 0xffff")
    A("v_lshlrev_b32 v9, v9, v14")
    A("v_bfe_u32 v8, v0, 1, 2")
    for m in range(4):
        A(f"v_cmp_eq_u32 vcc, {m}, v8")
        A("s_nop 1")
        A(f"v_cndmask_b32 v{M+m}, 0, v9, vcc")
    A("s_and_b32 s60, s21, 7")
    A("s_lshl_b32 s60, s60, 12")
    A("s_lshr_b32 s61, s21, 3")
    A(f"s_lshl_b32 s61, s61, {US + 3}")
    A("s_add_u32 s60, s60, s61")
    A("s_lshl_b32 s61, s20, 8")
    A("s_add_u32 s61, s61, s60")
    A(f"v_lshlrev_b32 v{UA}, {US}, v4")
    A(f"v_lshl_add_u32 v{UA}, v5, 4, v{UA}")
    A(f"v_and_b32 v{UA2}, {(1 << US) + 0xff}, v{UA}")
    if stamps > 4: stamp(4)

    def epass(a):
        A("; ---- scores partial of a pair of heads: E (16 rows per wave) x s (columns = head x hi/lo); last wave publishes ----")
        lds_wait(cS + 8*a, 4, "v6", "v8", "s43", "s46", sleep=slp)
        lds_wait(cS + 8*a + 4, 4, "v6", "v8", "s43", "s46", sleep=slp)
        for k in range(4): A(f"v_mov_b32 v{AC+k}, 0")
        for ch in range(8):
            for kk in range(4):
                A(f"ds_read_b128 v[{RA+8*kk}:{RA+8*kk+3}], v{EA} offset:{ch*1024 + kk*64 if e4 else (4*ch+kk)*64}")
                A(f"ds_read_b128 v[{RA+8*kk+4}:{RA+8*kk+7}], v{SB} offset:{2*a*SWS + (4*ch+kk)*64}")
            for kk in range(4):
                A(f"s_waitcnt lgkmcnt({6-2*kk})")
                A(f"v_mfma_f32_16x16x32_bf16 v[{AC}:{AC+3}], v[{RA+8*kk}:{RA+8*kk+3}], v[{RA+8*kk+4}:{RA+8*kk+7}], v[{AC}:{AC+3}]")
        A("s_lshl_b32 s36, s22, 6")
        A("v_bfe_u32 v9, v0, 1, 1")
        A("v_lshlrev_b32 v8, 4, v4")
        A("v_lshl_add_u32 v8, v9, 8, v8")
        A("v_add_u32 v8, s36, v8")
        A(f"v_add_u32 v8, {SC0 + 512*a}, v8")
        A("s_nop 4")
        for k in range(4):
            A(f"v_add_f32_dpp v{AC+4+k}, v{AC+k}, v{AC+k} quad_perm:[1,0,3,2] row_mask:0xf bank_mask:0xf")
        A(f"ds_write_b128 v8, v[{AC+4}:{AC+7}]")
        A("s_mov_b64 exec, 1")
        A(f"ds_add_rtn_u32 v8, v6, v7 offset:{cE + 4*a}")
        A("s_mov_b64 exec, -1")
        A("s_waitcnt lgkmcnt(0)")
        A("v_readfirstlane_b32 s43, v8")
        sk = newlab("nopub")
        A("s_nop 0")
        A(f"s_cmp_lg_u32 s43, 3")
        A(f"s_cbranch_scc1 {sk}")
        if sat:
            A("v_lshlrev_b32 v8, 2, v0")
            A(f"v_add_u32 v9, {SC0 + 512*a}, v8")
            A(f"ds_read_b32 v{G}, v9")
            A(f"ds_read_b32 v{G+1}, v9 offset:256")
            A(f"s_add_u32 s37, s60, {8192*a}")
            A("s_waitcnt lgkmcnt(0)")
            A(f"buffer_atomic_add_f32 v{G}, v8, s[32:35], s37 offen")
            A(f"buffer_atomic_add_f32 v{G+1}, v8, s[32:35], s37 offen offset:256")
            if sat > 1:
                A("s_waitcnt vmcnt(0)")
                A("v_mov_b32 v9, 1")
                A("s_mov_b64 exec, 1")
                A("buffer_atomic_add v9, off, s[32:35], s37 offset:1024 sc0")
                A("s_mov_b64 exec, -1")
                A("s_waitcnt vmcnt(0)")
            A(f"s_branch {sk}")
        A(f"v_add_u32 v9, {SC0 + 512*a}, v2")
        A("s_mov_b32 exec_hi, 0")
        A(f"ds_read_b128 v[{G}:{G+3}], v9")
        A(f"s_add_u32 s37, s61, {WS_SC + KS*a}")
        A("s_waitcnt lgkmcnt(0)")
        put_tags(G)
        if not nosst: A(f"buffer_store_dwordx4 v[{G}:{G+3}], v{UA}, s[32:35], s37 offen {sstpol}")
        A("s_mov_b64 exec, -1")
        A("s_nop 1")
        A(f"{sk}:")

    def pw(a):
        sk = newlab("nop"); oth = newlab("oth"); com = newlab("com")
        A(f"s_cmp_lg_u32 s22, 0")
        A(f"s_cbranch_scc1 {sk}")
        A(f"s_add_u32 s39, s47, {WS_P + 4096*a}")
        A(f"s_add_u32 s43, s21, {8*a}")
        A("s_and_b32 s43, s43, 15")
        A("s_cmp_lg_u32 s43, s20")
        A(f"s_cbranch_scc1 {oth}")
        lds_wait(cT, (tAR, tBR)[a], "v6", "v8", "s43", "s46", sleep=slp)
        A(f"s_add_u32 s37, s60, {WS_SC + KS*a}")
        A("v_lshrrev_b32 v3, 5, v0")
        A(f"v_lshl_add_u32 v3, v3, 8, v{UA2}")
        l = newlab("gp"); d = newlab("gpd")
        A(f"s_mov_b32 s46, {0 if nosst else 0x8000}")
        if nosg: A(f"s_branch {d}")
        A(f"{l}:")
        for i in range(8):
            A(f"buffer_load_dwordx4 v[{G+4*i}:{G+4*i+3}], v3, s[32:35], s37 offen offset:{512*i} {ldpol}")
        A("s_mov_b64 s[62:63], 0")
        for i in range(8):
            A(f"s_waitcnt vmcnt({7-i})")
            check_tags(G+4*i, 8, 9, "vcc")
            A("s_or_b64 s[62:63], s[62:63], vcc")
        A("s_cmp_eq_u64 s[62:63], 0")
        A(f"s_cbranch_scc1 {d}")
        A("s_sub_u32 s46, s46, 1")
        A(f"s_cbranch_scc1 {d}")
        A(f"s_sleep {gslp}")
        A(f"s_branch {l}")
        A(f"{d}:")
        for k in range(32): A(f"v_and_b32 v{G+k}, s57, v{G+k}")
        for st in (16, 8, 4):
            for k in range(st): A(f"v_add_f32 v{G+k}, v{G+k}, v{G+st+k}")
        for k in range(4): A(f"v_mov_b32 v{G+4+k}, v{G+k}")
        A("s_nop 1")
        for k in range(4): A(f"v_permlane32_swap_b32 v{G+k}, v{G+4+k}")
        for k in range(4): A(f"v_add_f32 v{G+k}, v{G+k}, v{G+4+k}")
        A(f"v_max_f32 v{G+4}, v{G}, v{G+1}")
        A(f"v_max3_f32 v{G+4}, v{G+4}, v{G+2}, v{G+3}")
        for rot in (8, 4, 2, 1):
            A("s_nop 1")
            A(f"v_max_f32_dpp v{G+4}, v{G+4}, v{G+4} row_ror:{rot} row_mask:0xf bank_mask:0xf")
        A("s_mov_b32 s36, 0x3e0293ee")
        for k in range(4):
            A(f"v_sub_f32 v{G+k}, v{G+k}, v{G+4}")
            A(f"v_mul_f32 v{G+k}, s36, v{G+k}")
            A(f"v_exp_f32 v{G+k}, v{G+k}")
        A("s_nop 0")
        A(f"v_add_f32 v{G+4}, v{G}, v{G+1}")
        A(f"v_add_f32 v{G+5}, v{G+2}, v{G+3}")
        A(f"v_add_f32 v{G+4}, v{G+4}, v{G+5}")
        for rot in (8, 4, 2, 1):
            A("s_nop 1")
            A(f"v_add_f32_dpp v{G+4}, v{G+4}, v{G+4} row_ror:{rot} row_mask:0xf bank_mask:0xf")
        A(f"v_rcp_f32 v{G+4}, v{G+4}")
        A("s_nop 0")
        for k in range(4): A(f"v_mul_f32 v{G+k}, v{G+k}, v{G+4}")
        put_tags(G)
        A("s_mov_b32 exec_hi, 0")
        if not nopst: A(f"buffer_store_dwordx4 v[{G}:{G+3}], v{UA}, s[32:35], s39 offen {stpol}")
        A("s_mov_b64 exec, -1")
        A(f"s_branch {com}")
        A(f"{oth}:")
        lds_wait(cT, (tAO, tBO)[a], "v6", "v8", "s43", "s46", sleep=slp)
        l = newlab("pp")
        A(f"s_mov_b32 s46, {0 if nopst else 0x8000}")
        if nopld: A(f"s_branch {com}")
        A(f"{l}:")
        A(f"buffer_load_dwordx4 v[{G}:{G+3}], v{UA2}, s[32:35], s39 offen {ldpol}")
        A("s_waitcnt vmcnt(0)")
        check_tags(G, 8, 9, "vcc")
        A("s_cmp_eq_u64 vcc, 0")
        A(f"s_cbranch_scc1 {com}")
        A("s_sub_u32 s46, s46, 1")
        A(f"s_cbranch_scc1 {com}")
        A(f"s_sleep {gslp}")
        A(f"s_branch {l}")
        A(f"{com}:")
        A("v_lshrrev_b32 v8, 5, v0")
        A("v_sub_u32 v9, 0, v8")
        A("v_and_b32 v9, 0xffff0000, v9")
        A("v_mov_b32 v14, 0x03020302")
        for k in range(4):
            A(f"v_and_b32 v{G+4+k}, s57, v{G+k}")
            A(f"v_and_b32 v{G+8}, v{G+4+k}, v9")
            A(f"v_sub_f32 v{G+4+k}, v{G+4+k}, v{G+8}")
            A(f"v_perm_b32 v{G+4+k}, v{G+4+k}, v{G+4+k}, v14")
        A("v_lshlrev_b32 v8, 8, v8")
        A(f"v_lshl_add_u32 v8, v5, {2 if f4 else 4}, v8")
        A("v_and_b32 v9, 1, v4")
        A("v_lshl_add_u32 v8, v9, 9, v8")
        A(f"v_add_u32 v8, {PD0 + 1024*a}, v8")
        if f4:
            for k in range(4): A(f"ds_write_b32 v8, v{G+4+k} offset:{64*k}")
        else:
            A(f"ds_write_b128 v8, v[{G+4}:{G+7}]")
        lds_inc(cP + 4*a, "v6", "v7")
        A(f"{sk}:")
        lds_wait(cP + 4*a, 1, "v6", "v8", "s43", "s46", sleep=slp)
        for hb in range(2):
            for i in range(4):
                A(f"ds_read_b128 v[{PV+16*hb+4*i}:{PV+16*hb+4*i+3}], v{PA} offset:{1024*a + 512*hb + 16*i}")
        for k in range(16): A(f"v_mov_b32 v{AC+k}, 0")
        A("s_waitcnt vmcnt(0) lgkmcnt(0)")
        for t in range(16):
            b = BB + 8*(t % 2)
            for hb in range(2):
                for m in range(4): A(f"v_and_b32 v{b+4*hb+m}, v{PV+16*hb+t}, v{M+m}")
            A("s_nop 0")
            for hb in range(2):
                for tau in range(2):
                    r = F0 + 64*tau + 4*t
                    ac = AC + 8*hb + 4*tau
                    if hb == 1 and tau == 0 and False: A("s_nop 0")
                    A(f"v_mfma_f32_16x16x32_bf16 v[{ac}:{ac+3}], v[{r}:{r+3}], v[{b+4*hb}:{b+4*hb+3}], v[{ac}:{ac+3}]")
        A("s_nop 7\ns_nop 1")
        for k in range(16):
            A(f"v_add_f32_dpp v{RA+k}, v{AC+k}, v{AC+k} row_ror:8 row_mask:0xf bank_mask:0xf")
        for k in range(16):
            hb, tau, rr = k // 8, (k // 4) % 2, k % 4
            A(f"ds_write_b32 v{WW}, v{RA+k} offset:{(2*a+hb)*SWS + tau*512 + rr*32}")
        A("s_mov_b64 exec, 1")
        A(f"ds_add_u32 v6, v7 offset:{cW + 8*a}")
        A(f"ds_add_u32 v6, v7 offset:{cW + 8*a + 4}")
        A("s_mov_b64 exec, -1")
        if a == 1 and sw:
            sk2 = newlab("now")
            A("s_cmp_lg_u32 s22, 3")
            A(f"s_cbranch_scc1 {sk2}")
            if wlate: lds_wait(cS + 16 + 4*(wlate - 1), 4, "v6", "v8", "s43", "s46", sleep=slp)
            lds_wait(cW + 12, 4, "v6", "v8", "s43", "s46", sleep=slp)
            A("v_lshrrev_b32 v8, 5, v0")
            A("v_lshlrev_b32 v8, 9, v8")
            vscat("v8", "v0", 0, UB, -6, "v9", "v8")
            vscat("v8", "v0", 3, WB, -6, "v9", "v8")
            A(f"v_add_u32 v8, {SW0 + 3*SWS + (8 - NP)*512}, v8")
            for i in range((NP + 1) // 2): A(f"ds_read_b128 v[{AC+4*i}:{AC+4*i+3}], v8 offset:{1024*i}")
            A(f"s_add_u32 s36, s61, {WS_W}")
            A(f"s_add_u32 s37, s36, {4 << US}")
            A("s_waitcnt lgkmcnt(0)")
            for i in range((NP + 1) // 2):
                put_tags(AC + 4*i)
                if 2*i + 1 == NP: A("s_mov_b32 exec_hi, 0")
                if not nowst: A(f"buffer_store_dwordx4 v[{AC+4*i}:{AC+4*i+3}], v{UA}, s[32:35], s{36+i} offen {stpol}")
            A("s_mov_b64 exec, -1")
            A(f"{sk2}:")
        if a == 1 and not sw:
            sk2 = newlab("now")
            A(f"s_cmp_lt_u32 s22, {(8 - NP) // 2}")
            A(f"s_cbranch_scc1 {sk2}")
            if wlate: lds_wait(cS + 16 + 4*(wlate - 1), 4, "v6", "v8", "s43", "s46", sleep=slp)
            A("v_and_b32 v8, 8, v0")
            A("v_cmp_ne_u32 vcc, 0, v8")
            A(f"v_lshlrev_b32 v8, {US + 1 - 3}, v8")
            A("v_and_b32 v9, 7, v0")
            A("v_lshl_add_u32 v8, v9, 4, v8")
            A("v_and_b32 v9, 1, v4")
            A("v_lshl_add_u32 v8, v9, 7, v8")
            A("v_lshrrev_b32 v9, 1, v4")
            A(f"v_lshl_add_u32 v8, v9, {US}, v8")
            for k in range(4): A(f"v_cndmask_b32 v{AC+k}, v{RA+8+k}, v{RA+12+k}, vcc")
            put_tags(AC)
            A("s_sub_u32 s37, s22, 2")
            A(f"s_lshl_b32 s37, s37, {US + 2}")
            A("s_add_u32 s36, s61, s37")
            A(f"s_add_u32 s36, s36, {WS_W}")
            if NP % 2:
                A(f"s_cmp_eq_u32 s22, {(8 - NP) // 2}")
                A("s_cselect_b64 exec, vcc, -1")
            if not nowst: A(f"buffer_store_dwordx4 v[{AC}:{AC+3}], v8, s[32:35], s36 offen {stpol}")
            A("s_mov_b64 exec, -1")
            A(f"{sk2}:")

    epass(0)
    if stamps > 5: stamp(5)
    pw(0)
    if stamps > 6: stamp(6)
    epass(1)
    pw(1)
    if stamps > 7: stamp(7)
    if noo: A("s_endpgm")
    A("s_cmp_eq_u32 s22, 3")
    A("s_cbranch_scc1 L_final")
    A("s_cmp_lt_u32 s22, 2")
    A("s_cbranch_scc1 L_disp")
    A("v_lshrrev_b32 v8, 5, v0")
    A("v_and_b32 v9, 31, v0")
    A("v_lshlrev_b32 v9, 4, v9")
    A("v_lshl_add_u32 v9, v8, 11, v9")
    A(f"v_add_u32 v15, {OB0}, v9")
    A(f"s_add_u32 s37, s61, {WS_O}")
    A(f"s_add_u32 s38, s37, {4 << US}")
    def osum(r, off):
        for w in range(4): A(f"ds_read_b128 v[{r+4*w}:{r+4*w+3}], v15 offset:{off + 512*w}")
    def oadd(r):
        A("s_waitcnt lgkmcnt(0)")
        for k in range(4):
            A(f"v_add_f32 v{r+k}, v{r+k}, v{r+4+k}")
            A(f"v_add_f32 v{r+8+k}, v{r+8+k}, v{r+12+k}")
        for k in range(4): A(f"v_add_f32 v{r+k}, v{r+k}, v{r+8+k}")
        put_tags(r)
    if not eo:
        for a in range(2):
            lds_wait(cS + 16 + 8*a, 4, "v6", "v8", "s43", "s46", sleep=slp)
            lds_wait(cS + 16 + 8*a + 4, 4, "v6", "v8", "s43", "s46", sleep=(oslp if a else slp))
            r = G + 16*a
            osum(r, 4096*a)
            if a == 1:
                A(f"buffer_store_dwordx4 v[{G}:{G+3}], v{UA}, s[32:35], s37 offen {stpol}")
            oadd(r)
        A(f"buffer_store_dwordx4 v[{G+16}:{G+19}], v{UA}, s[32:35], s38 offen {stpol}")
    else:
        for h in range(eo): lds_wait(cS + 16 + 4*h, 4, "v6", "v8", "s43", "s46", sleep=slp)
        osum(G, 0)
        oadd(G)
        A(f"buffer_store_dwordx4 v[{G}:{G+3}], v{UA}, s[32:35], s37 offen {stpol}")
        if eo == 3:
            A("s_mov_b32 exec_hi, 0")
            osum(G+16, 4096)
            oadd(G+16)
            A(f"buffer_store_dwordx4 v[{G+16}:{G+19}], v{UA}, s[32:35], s38 offen {stpol}")
            A("s_mov_b64 exec, -1")
        else:
            lds_wait(cS + 24, 4, "v6", "v8", "s43", "s46", sleep=slp)
        lds_wait(cS + 28, 4, "v6", "v8", "s43", "s46", sleep=oslp)
        if eo == 3: A("s_mov_b32 exec_lo, 0")
        osum(G+16, 4096)
        oadd(G+16)
        A(f"buffer_store_dwordx4 v[{G+16}:{G+19}], v{UA}, s[32:35], s38 offen {stpol}")
        A("s_mov_b64 exec, -1")
    if stamps >= 15:
        A("s_memrealtime s[70:71]\ns_waitcnt vmcnt(0)\ns_memrealtime s[72:73]\ns_waitcnt lgkmcnt(0)")
        A("s_add_u32 s90, s18, 0x20000000\ns_addc_u32 s91, s19, 0")
        A("s_lshl_b32 s37, s2, 7\nv_mov_b32 v9, s37")
        A("v_mov_b32 v12, s70\nv_mov_b32 v13, s71\nv_mov_b32 v14, s72\nv_mov_b32 v15, s73\ns_mov_b64 exec, 1")
        A("global_store_dwordx4 v9, v[12:15], s[90:91] offset:96")
    A("s_endpgm")
    A("L_disp:")
    A("s_lshl_b32 s36, s21, 24")
    A("s_xor_b32 s37, s69, 3")
    A("s_lshl_b32 s37, s37, 22")
    A("s_add_u32 s36, s36, s37")
    A("s_add_u32 s36, s36, 1")
    scat("s37", "s20", MB, 0, "s38", add="s36")
    A(f"v_mov_b32 v3, {DS0}")
    A("s_mov_b64 exec, 1")
    for k in range(NL):
        tile = 8 - NP - NL + k
        A(f"s_add_u32 s38, s37, {scat_c(tile, TB, 0)}")
        A("v_mov_b32 v8, s38")
        A(f"v_mov_b32 v9, {SW0 + 3*SWS + tile*512}")
        A(f"ds_write_b64 v3, v[8:9] offset:{8*k}")
    A("s_mov_b64 exec, -1")
    A("s_lshl_b32 s38, s22, 3")
    A(f"s_add_u32 s38, s38, {8*NL - 8}")
    A("v_add_u32 v3, s38, v3")
    if not sw:
        A("v_bfe_u32 v8, v0, 3, 2")
        A("v_and_b32 v9, 7, v0")
        A("v_lshlrev_b32 v15, 7, v8")
        A("v_lshl_add_u32 v15, v9, 2, v15")
    A(f"s_add_u32 s39, s60, {WS_W + (0x80000000 if sw else ((4 - NP) << (US + 1)))}")
    A("s_lshl_b32 s44, s22, 2")
    A(f"s_add_u32 s44, s44, {4*(NL-1) + trig}")
    if not sw:
        A("s_lshl_b32 s45, s22, 9")
        A("s_add_u32 s45, s45, 512")
    A("L_dl:")
    lds_wait(cQ, "s44", "v6", "v8", "s43", "s46", sleep=dslp)
    lds_wait(0, 1, "v3", "v8", "s43", "s46", sleep=dslp)
    A("s_cmp_eq_u32 s43, -1")
    A("s_cbranch_scc1 L_dexit")
    A("v_mov_b32 v8, 1")
    A("s_mov_b64 exec, 1")
    A("buffer_atomic_add v8, off, s[32:35], s68 sc0")
    A("s_mov_b64 exec, -1")
    A("s_waitcnt vmcnt(0)")
    A("v_readfirstlane_b32 s43, v8")
    A("s_nop 0")
    A(f"s_cmp_ge_u32 s43, {16*NP}")
    A("s_cbranch_scc1 L_dend")
    A("s_and_b32 s37, s43, 15")
    A("s_lshr_b32 s38, s43, 4")
    A("s_lshl_b32 s42, s37, 8")
    A(f"s_lshl_b32 s41, s38, {US + 1}")
    A("s_add_u32 s42, s42, s41")
    A("s_add_u32 s42, s42, s39")
    if not nowld and not sw: A(f"buffer_load_dwordx4 v[{G}:{G+3}], v{UA2}, s[32:35], s42 offen {ldpol}")
    A(f"s_add_u32 s38, s38, {8 - NP}")
    scat("s41", "s37", MB, 0, "s43", add="s36")
    scat("s37", "s38", TB, 0, "s43", add="s41")
    A("v_mov_b32 v8, s37")
    if sw:
        A("v_mov_b32 v9, s42")
        A("ds_write_b64 v3, v[8:9] offset:8")
        A("v_add_u32 v3, 16, v3")
        A("s_add_u32 s44, s44, 8")
        A("s_branch L_dl")
    if not sw:
        A("ds_write_b32 v3, v8 offset:8")
        A(f"s_mov_b32 s46, {0 if nowst else 0x8000}")
        A("L_dw:")
        A("s_waitcnt vmcnt(0)")
        check_tags(G, 8, 9, "vcc")
        A("s_cmp_eq_u64 vcc, 0")
        A("s_cbranch_scc1 L_dw_ok")
        A("s_sub_u32 s46, s46, 1")
        A("s_cbranch_scc1 L_dw_ok")
        A(f"s_sleep {gslp}")
        A(f"buffer_load_dwordx4 v[{G}:{G+3}], v{UA2}, s[32:35], s42 offen {ldpol}")
        A("s_branch L_dw")
        A("L_dw_ok:")
        A("v_add_u32 v9, s45, v15")
        for k in range(4):
            A(f"v_and_b32 v{G+k}, s57, v{G+k}")
            A(f"ds_write_b32 v9, v{G+k} offset:{32*k}")
        A("v_mov_b32 v8, s45")
        A("ds_write_b32 v3, v8 offset:12")
        A("v_add_u32 v3, 16, v3")
        A("s_add_u32 s44, s44, 8")
        A("s_add_u32 s45, s45, 1024")
        A("s_branch L_dl")
    A("L_dend:")
    A("v_mov_b32 v8, -1")
    A("ds_write_b32 v3, v8 offset:8")
    A("L_dexit:")
    A("s_cmp_lg_u32 s22, 0")
    A("s_cbranch_scc1 L_done")
    A("L_final:")
    A("v_lshrrev_b32 v8, 2, v0")
    A("v_and_b32 v9, 3, v0")
    A("v_lshlrev_b32 v15, 3, v9")
    A("v_lshlrev_b32 v9, 4, v9")
    A("v_lshl_add_u32 v3, v8, 8, v9")
    A("s_and_b32 s39, s22, 1")
    A("s_lshl_b32 s38, s20, 1")
    A("s_add_u32 s39, s39, s38")
    A("s_lshr_b32 s38, s39, 2")
    A(f"s_lshl_b32 s38, s38, {US}")
    A("s_and_b32 s37, s39, 3")
    A("s_lshl_b32 s37, s37, 6")
    A("s_add_u32 s37, s37, s38")
    A("s_add_u32 s37, s37, s60")
    A(f"s_add_u32 s37, s37, {WS_O}")
    lds_wait(cS + 28, 4, "v6", "v8", "s43", "s46", sleep=oslp)
    A("s_mov_b64 s[62:63], -1")
    A("s_mov_b32 s46, 0x8000")
    A("L_fpoll:")
    A("s_mov_b64 exec, s[62:63]")
    A(f"buffer_load_dwordx4 v[{G}:{G+3}], v3, s[32:35], s37 offen {ldpol}")
    A("s_mov_b64 exec, -1")
    A("s_waitcnt vmcnt(0)")
    check_tags(G, 8, 9, "s[62:63]")
    A("s_nop 0")
    A("s_bcnt1_i32_b64 s43, s[62:63]")
    A("s_cbranch_scc0 L_fdone")
    A("s_sub_u32 s46, s46, 1")
    A("s_cbranch_scc1 L_fdone")
    A(f"s_cmp_le_u32 s43, {4*fastx}")
    A("s_cbranch_scc1 L_ffast")
    if fslp: A(f"s_sleep {fslp}")
    A("s_branch L_fpoll")
    A("L_ffast:")
    A("s_mov_b64 exec, s[62:63]")
    A(f"buffer_load_dwordx4 v[{G+8}:{G+11}], v3, s[32:35], s37 offen {ldpol}")
    A(f"s_sleep {fdelta}")
    A(f"buffer_load_dwordx4 v[{G+12}:{G+15}], v3, s[32:35], s37 offen {ldpol}")
    A("L_ff:")
    for j in range(2):
        r = G + 8 + 4*j
        A("s_mov_b64 exec, -1")
        A("s_waitcnt vmcnt(1)")
        check_tags(r, 8, 9, "vcc")
        A("s_andn2_b64 exec, s[62:63], vcc")
        for k in range(4): A(f"v_mov_b32 v{G+k}, v{r+k}")
        A("s_and_b64 s[62:63], s[62:63], vcc")
        A("s_cbranch_scc0 L_fdone")
        A("s_mov_b64 exec, s[62:63]")
        A(f"buffer_load_dwordx4 v[{r}:{r+3}], v3, s[32:35], s37 offen {ldpol}")
    A("s_sub_u32 s46, s46, 1")
    A("s_cbranch_scc0 L_ff")
    A("L_fdone:")
    A("s_mov_b64 exec, -1")
    if stamps >= 15: A("s_memrealtime s[86:87]")
    for k in range(4): A(f"v_and_b32 v{G+k}, s57, v{G+k}")
    for rot in (4, 8):
        A("s_nop 1")
        for k in range(4): A(f"v_add_f32_dpp v{G+k}, v{G+k}, v{G+k} row_ror:{rot} row_mask:0xf bank_mask:0xf")
    for sw in ("16", "32"):
        for k in range(4): A(f"v_mov_b32 v{G+4+k}, v{G+k}")
        A("s_nop 1")
        for k in range(4): A(f"v_permlane{sw}_swap_b32 v{G+k}, v{G+4+k}")
        for k in range(4): A(f"v_add_f32 v{G+k}, v{G+k}, v{G+4+k}")
    A(f"v_cvt_pk_bf16_f32 v{G}, v{G}, v{G+1}")
    A(f"v_cvt_pk_bf16_f32 v{G+1}, v{G+2}, v{G+3}")
    A("s_lshl_b32 s36, s21, 10")
    A("s_lshl_b32 s38, s39, 5")
    A("s_lshl_b32 s43, s69, 8")
    A("s_xor_b32 s38, s38, s43")
    A("s_add_u32 s36, s36, s38")
    A("s_mov_b64 exec, 15")
    A(f"buffer_store_dwordx2 v[{G}:{G+1}], v15, s[52:55], s36 offen {opol}")
    A("s_cmp_lg_u32 s39, 0")
    A("s_cbranch_scc1 L_fend")
    A("v_mov_b32 v8, s56")
    A("s_mov_b64 exec, 1")
    A(f"buffer_store_dword v8, off, s[32:35], s47 {eppol}")
    A("L_fend:")
    if hold:
        A("L_hold:\ns_memrealtime s[86:87]\ns_waitcnt lgkmcnt(0)\ns_sub_u32 s86, s86, s70")
        A(f"s_cmp_lt_u32 s86, {hold*100}\ns_cbranch_scc1 L_hold\ns_endpgm")
    if stamps > 3:
        A("s_mov_b64 exec, -1")
        A("s_cmp_lg_u32 s22, 3\ns_cbranch_scc1 L_done")
        A("s_waitcnt vmcnt(0)")
        stamp(3)
        if dbgst:
            dbg_store([(6, "s76", 1), (7, "s76", 0)])
            A("s_endpgm")
        stamp_store(range(3, min(stamps, 8)))
        if stamps >= 15:
            A("v_mov_b32 v10, s86\nv_mov_b32 v11, s87\ns_mov_b64 exec, 1")
            A("global_store_dwordx2 v9, v[10:11], s[90:91] offset:112")
    A("L_done:")
    A("s_endpgm")
    A(f""".section .rodata,"a"
.p2align 6
.amdhsa_kernel {KN}
  .amdhsa_next_free_vgpr 256
  .amdhsa_next_free_sgpr 100
  .amdhsa_accum_offset 256
  .amdhsa_group_segment_fixed_size 0
  .amdhsa_kernarg_size 64
  .amdhsa_user_sgpr_count 2
  .amdhsa_user_sgpr_kernarg_segment_ptr 1
  .amdhsa_system_sgpr_workgroup_id_x 1
  .amdhsa_float_denorm_mode_32 3
.end_amdhsa_kernel""")
    return "\n".join(L) + "\n"

if __name__ == "__main__":
    for spec in sys.argv[1:]:
        path, _, opts = spec.partition(":")
        kw = {}
        for p in filter(None, opts.split(",")):
            k, v = p.split("=")
            kw[k] = int(v) if v.lstrip("-").isdigit() else v
        open(path, "w").write(gen(**kw))
        print(path)
```

```python
import sys
KN = "standalone__low_rank_proj_linformer__decode_kernel"

HEADER = """; Kernarg layout for this problem (64 bytes, ptrs only, base s[0:1]):
"""

def gen(D=5, DV=None, stamps=0, epol="nt", fpol="nt", hthr=2, prio=1, slp=8, oslp=1, gslp=8, fslp=2,
        stpol="sc1", ldpol="sc1", kvpol="nt", qpol="", nosst=0, nosg=0, noo=0, noef=0, tlb=0, tlbat=2, fthr=None, tAR=22, tAO=25, tBR=36, tBO=40, npoll=4, NP=2, NL=2, dslp=1, trig=4, nowst=0, nowld=0, fastx=0, fdelta=8, noe=0, nof=0, etouch=0, ftouch=0, tb='15.16.17', mb='18.19.20.21', f4=0, e4=0, pf=0, pfpol='', pfw=1, dbgst=0, hold=0, opol='', eppol='', wsoff=0, hx=0, hxs=0, eo=0, wlate=0, nopst=0, nopld=0, sstpol=None, gc=0, pfsplit=0, ealt=0, falt=0):
    sstpol = stpol if sstpol is None else sstpol
    TB = [int(x) for x in str(tb).split('.')]; MB = [int(x) for x in str(mb).split('.')]
    assert sorted(TB + MB) == list(range(15, 22))
    fthr = fthr or hthr
    DV = DV or D
    L = []
    A = L.append
    ESTR = 2064
    SW0 = 64 * ESTR
    SWS = 4224
    PSTR = 2112
    OB0 = SW0 + 4 * SWS
    SC0 = OB0 + 8192
    PD0 = SC0 + 1024
    CN0 = PD0 + 2048
    DS0 = CN0 + 128
    NDESC = NL + 16*NP + 1
    LDS = DS0 + 896
    assert NDESC * 8 <= 896 and 1 <= NL and NP + NL <= 6
    cS, cE, cP, cW, cT, cQ = 0, 32, 48, 64, 80, 84
    WS_EP = 0
    WS_SC = 1 << 16
    WS_P = 1 << 19
    WS_C = 1 << 15
    WS_W = 2 << 20
    WS_O = 1 << 20
    lab = [0]
    def newlab(p):
        lab[0] += 1
        return f"L_{p}{lab[0]}"
    def lds_wait(off, target, vaddr, vt, st, sc, sleep=2):
        l = newlab("w"); d = newlab("wd")
        A(f"s_mov_b32 {sc}, 0x40000")
        A(f"{l}:")
        A(f"ds_read_b32 {vt}, {vaddr} offset:{off}")
        A("s_waitcnt lgkmcnt(0)")
        A(f"v_readfirstlane_b32 {st}, {vt}")
        A("s_nop 0")
        A(f"s_cmp_ge_u32 {st}, {target}")
        A(f"s_cbranch_scc1 {d}")
        A(f"s_sub_u32 {sc}, {sc}, 1")
        A(f"s_cbranch_scc1 {d}")
        A(f"s_sleep {sleep}")
        A(f"s_branch {l}")
        A(f"{d}:")
    def lds_inc(off, vaddr, vone):
        A("s_mov_b64 exec, 1")
        A(f"ds_add_u32 {vaddr}, {vone} offset:{off}")
        A("s_mov_b64 exec, -1")
    def scat(dst, src, bits, sh, tmp, add=None):
        runs = []
        for i, b in enumerate(bits):
            if runs and runs[-1][1] + runs[-1][2] == b and runs[-1][0] + runs[-1][2] == i: runs[-1][2] += 1
            else: runs.append([i, b, 1])
        cur = add
        for i, b, n in runs:
            t = tmp if cur is not None else dst
            if len(runs) == 1: A(f"s_lshl_b32 {t}, {src}, {b + sh}")
            else:
                A(f"s_bfe_u32 {t}, {src}, {(n << 16) | i}")
                A(f"s_lshl_b32 {t}, {t}, {b + sh}")
            if cur is not None: A(f"s_add_u32 {dst}, {cur}, {t}")
            cur = dst
    scat_c = lambda v, bits, sh: sum(((v >> i) & 1) << (b + sh) for i, b in enumerate(bits))
    def stamp(i):
        if stamps and i < stamps:
            A(f"s_memrealtime s[{70+2*i}:{71+2*i}]")
    def dbg_store(pairs):
        A("s_waitcnt lgkmcnt(0)")
        A("s_mov_b64 exec, 1")
        for w, sr, inv in pairs:
            A(f"s_and_b32 s43, {sr}, 0xffffff")
            if inv: A("s_xor_b32 s43, s43, 0xffffff")
            A("v_mov_b32 v10, s43")
            A(f"v_mov_b32 v9, {4*w}")
            A("global_atomic_umax v9, v10, s[16:17]")
            A("s_nop 1")
        A("s_mov_b64 exec, -1")
    def stamp_store(idx):
        A("s_waitcnt lgkmcnt(0)")
        A("s_add_u32 s90, s18, 0x20000000\ns_addc_u32 s91, s19, 0")
        A("s_lshl_b32 s37, s2, 7\nv_mov_b32 v9, s37")
        for i in idx:
            A(f"v_mov_b32 v10, s{70+2*i}\nv_mov_b32 v11, s{71+2*i}")
            A("s_mov_b64 exec, 1")
            A(f"global_store_dwordx2 v9, v[10:11], s[90:91] offset:{8*i}")
            A("s_mov_b64 exec, -1")
            A("s_nop 1")

    A(HEADER + f"; @launch grid=(256,1,1) block=(512,1,1) lds={LDS}")
    A('.amdgcn_target "amdgcn-amd-amdhsa--gfx950"')
    A(".text")
    A(f".globl {KN}\n.p2align 8\n.type {KN},@function\n{KN}:")
    A("s_cmp_ge_u32 s2, 256")
    A("s_cbranch_scc1 L_done")
    A("s_load_dwordx16 s[4:19], s[0:1], 0")
    stamp(0)
    A("v_lshrrev_b32 v1, 6, v0")
    A("v_and_b32 v0, 63, v0")
    A("v_readfirstlane_b32 s3, v1")
    A("s_and_b32 s20, s2, 15")
    A("s_lshr_b32 s21, s2, 4")
    if hx < 4:
        A(f"s_lshr_b32 s69, s21, {hxs}")
        A(f"s_and_b32 s69, s69, {hx}")
    else:
        tab = {4: [0, 2, 1, 3], 5: [0, 3, 1, 2], 6: [0, 1, 3, 2]}[hx]
        A("s_and_b32 s69, s21, 3")
        A("s_lshl_b32 s69, s69, 1")
        A(f"s_lshr_b32 s69, {sum(v << (2*i) for i, v in enumerate(tab))}, s69")
        A("s_and_b32 s69, s69, 3")
    A("v_lshrrev_b32 v4, 4, v0")
    A("v_and_b32 v5, 15, v0")
    A(f"v_mov_b32 v6, {CN0}")
    A("v_mov_b32 v7, 1")
    A("v_lshlrev_b32 v2, 4, v0")
    A("s_cmp_ge_u32 s3, 4")
    A("s_cbranch_scc1 L_helper")

    RING = 16; Q = 48; P = 64; X0, X1, Y, T = 72, 73, 74, 75
    M2 = 76; SA = 77; WA = 78; W = 79; ACC = 80; TM = 88; OA = 96; CA = 97; LP = 98; DA = 99; DV0 = 100
    A("v_add_u32 v3, 4096, v2")
    A("v_lshlrev_b32 v8, 4, v5")
    A("s_lshl_b32 s36, s21, 24")
    scat("s36", "s20", MB, 0, "s37", add="s36")
    A("s_lshl_b32 s37, s3, 13")
    A("s_add_u32 s36, s36, s37")
    A("s_lshl_b32 s50, s69, 22")
    A("s_add_u32 s50, s50, s36")
    A("s_lshl_b32 s39, s21, 10")
    for h in range(4):
        A(f"s_xor_b32 s{52+h}, s69, {h}")
        A(f"s_lshl_b32 s{52+h}, s{52+h}, 8")
        A(f"s_add_u32 s{52+h}, s{52+h}, s39")
    A("s_waitcnt lgkmcnt(0)")
    A("s_mov_b32 s24, s6\ns_mov_b32 s25, s7\ns_mov_b32 s26, 0x10000000\ns_mov_b32 s27, 0x20000")
    A("s_mov_b32 s32, s4\ns_mov_b32 s33, s5\ns_mov_b32 s34, 16384\ns_mov_b32 s35, 0x20000")
    RINGB = 104
    def kvload(idx, srd, soff, RING=RING):
        s = idx % 8
        A(f"buffer_load_dwordx4 v[{RING+4*s}:{RING+4*s+3}], v{2 + s//4}, s[{srd}:{srd+3}], {soff} offen offset:{(s%4)*1024} {kvpol}")
    for h in range(4):
        A(f"buffer_load_dwordx4 v[{Q+4*h}:{Q+4*h+3}], v8, s[32:35], s{52+h} offen {qpol}")
    for u in range(D): kvload(u, 24, "s50")
    A("s_mov_b32 s28, s8\ns_mov_b32 s29, s9\ns_mov_b32 s30, 0x10000000\ns_mov_b32 s31, 0x20000")
    if prio: A(f"s_setprio {prio}")
    A("v_and_b32 v9, 1, v0")
    A("v_sub_u32 v10, 0, v9")
    A(f"v_and_b32 v{M2}, 0xffff0000, v10")
    A(f"v_mul_u32_u24 v{SA}, {PSTR}, v9")
    A("v_bfe_u32 v10, v0, 2, 2")
    A("v_lshlrev_b32 v10, 2, v10")
    A("v_add_u32 v10, v10, v4")
    A("s_lshl_b32 s37, s3, 5")
    A("v_add_u32 v10, s37, v10")
    A(f"v_lshl_add_u32 v{SA}, v10, 1, v{SA}")
    A(f"v_add_u32 v{SA}, {SW0}, v{SA}")
    A("v_and_b32 v10, 7, v0")
    A("v_lshlrev_b32 v10, 2, v10")
    A("v_add_u32 v10, v10, v4")
    A(f"v_lshlrev_b32 v{LP}, 2, v10")
    A("v_add_u32 v10, s37, v10")
    A(f"v_lshlrev_b32 v{WA}, 2, v10")
    A(f"v_add_u32 v{WA}, {SW0}, v{WA}")
    A("v_lshlrev_b32 v10, 5, v5")
    A("v_lshl_add_u32 v10, v4, 3, v10")
    A("s_lshl_b32 s37, s3, 9")
    A("v_add_u32 v10, s37, v10")
    A(f"v_add_u32 v{OA}, {OB0}, v10")
    for k in range(8): A(f"v_mov_b32 v{ACC+k}, 0")
    A(f"v_mov_b32 v{CA}, v6")
    A("s_cmp_eq_u32 s3, 0")
    A("s_cselect_b32 s48, 1, 0")
    A("s_mov_b32 s49, 0")
    A("s_mov_b32 s40, 0xffff0000")
    A("s_barrier")
    if dbgst: A(f"s_waitcnt vmcnt({D-1})\ns_memrealtime s[84:85]")
    A("s_mov_b32 s38, 0")
    A("s_mov_b32 s41, s50")

    def next_off():
        A("s_add_u32 s43, s38, 1")
        A("s_lshr_b32 s44, s43, 3")
        A("s_and_b32 s43, s43, 7")
        A("s_xor_b32 s44, s44, s69")
        A("s_lshl_b32 s44, s44, 22")
        A("s_add_u32 s42, s36, s44")
        scat("s42", "s43", TB, 0, "s44", add="s42")
    def tick():
        l = newlab("nt")
        A("s_cmp_eq_u32 s48, 0")
        A(f"s_cbranch_scc1 {l}")
        lds_inc(cT, "v6", "v7")
        A(f"{l}:")
    def stage_done():
        lds_inc(cS, f"v{CA}", "v7")
        A(f"v_add_u32 v{CA}, 4, v{CA}")

    def kstep(cur_srd, nxt_srd, nxt_off, Din, Dout):
        issued = Din
        for u in range(8):
            A(f"s_waitcnt vmcnt({issued - u - 1})")
            want = u + 1 + (Din if u < 7 else Dout) if Din == Dout else u + 1 + Din + (Dout - Din) * (u + 1) // 8
            while issued < want:
                if issued < 8: kvload(issued, cur_srd, "s41")
                else: kvload(issued, nxt_srd, nxt_off)
                issued += 1
            r = RING + 4*u
            A(f"v_dot2_f32_bf16 v{P+u}, v{r}, v{Q}, 0")
            for m in range(1, 4):
                A(f"v_dot2_f32_bf16 v{P+u}, v{r+m}, v{Q+m}, v{P+u}")
            if u % 4 == 3:
                e = u // 4; p = P + 4*e
                A(f"v_add_f32_dpp v{X0}, v{p}, v{p} row_ror:8 row_mask:0xf bank_mask:0x3")
                A(f"v_add_f32_dpp v{X1}, v{p+1}, v{p+1} row_ror:8 row_mask:0xf bank_mask:0x3")
                A("s_nop 0")
                A(f"v_add_f32_dpp v{X0}, v{p+2}, v{p+2} row_ror:8 row_mask:0xf bank_mask:0xc")
                A(f"v_add_f32_dpp v{X1}, v{p+3}, v{p+3} row_ror:8 row_mask:0xf bank_mask:0xc")
                A(f"s_nop 0")
                A(f"v_add_f32_dpp v{Y}, v{X0}, v{X0} row_half_mirror row_mask:0xf bank_mask:0x5")
                A("s_nop 1")
                A(f"v_add_f32_dpp v{Y}, v{X1}, v{X1} row_half_mirror row_mask:0xf bank_mask:0xa")
                A("s_nop 1")
                A(f"v_add_f32_dpp v{Y}, v{Y}, v{Y} quad_perm:[1,0,3,2] row_mask:0xf bank_mask:0xf")
                A("s_nop 1")
                A(f"v_add_f32_dpp v{Y}, v{Y}, v{Y} quad_perm:[2,3,0,1] row_mask:0xf bank_mask:0xf")
                A(f"v_and_b32 v{T}, v{Y}, v{M2}")
                A(f"v_sub_f32 v{T}, v{Y}, v{T}")
                A(f"ds_write_b16_d16_hi v{SA}, v{T} offset:{32*e}")
        assert issued == 8 + Dout
        A(f"v_add_u32 v{SA}, 256, v{SA}")

    A("L_kloop:")
    next_off()
    kstep(24, 24, "s42", D, D)
    tick()
    A("s_mov_b32 s41, s42")
    A("s_add_u32 s38, s38, 1")
    A("s_and_b32 s43, s38, 7")
    A("s_cbranch_scc1 L_knohead")
    stage_done()
    A(f"v_add_u32 v{SA}, {SWS - 2048}, v{SA}")
    for k in range(12): A(f"v_mov_b32 v{Q+k}, v{Q+4+k}")
    A("L_knohead:")
    A("s_cmp_lt_u32 s38, 31")
    A("s_cbranch_scc1 L_kloop")
    kstep(24, 28, "s50", D, DV)
    tick()
    stage_done()
    stamp(1)
    def vproc(u, RING=RING):
        r = RING + 4*u
        for m in range(4):
            A(f"v_lshlrev_b32 v{TM+2*m}, 16, v{r+m}")
            A(f"v_and_b32 v{TM+2*m+1}, s40, v{r+m}")
        for k in range(8):
            A(f"v_fmac_f32_dpp v{ACC+k}, v{W}, v{TM+k} row_newbcast:{u} row_mask:0xf bank_mask:0xf")
    def vpart(u0, u1, drain=False, pull=False):
        for u in range(u0, u1):
            if drain:
                A(f"s_waitcnt vmcnt({7-u})")
            else:
                A(f"s_waitcnt vmcnt({DV-1})")
                if u + DV < 8: kvload(u + DV, 28, "s41")
                else: kvload(u + DV, 28, "s42")
            if u == 0: A("s_waitcnt lgkmcnt(0)")
            if pull and u == u1 - 1:
                A("s_mov_b64 exec, 1")
                A(f"ds_add_rtn_u32 v{DV0}, v6, v7 offset:{cQ}")
                A("s_mov_b64 exec, -1")
            vproc(u)
    def vstep():
        A(f"ds_read_b32 v{W}, v{WA}")
        vpart(0, 8)
        A(f"v_add_u32 v{WA}, 512, v{WA}")
    def vhead_end():
        A("s_nop 1")
        for k in range(4): A(f"v_permlane32_swap_b32 v{ACC+k}, v{ACC+k+4}")
        for k in range(4): A(f"v_add_f32 v{ACC+k}, v{ACC+k}, v{ACC+k+4}")
        A("s_nop 0")
        for k in range(2): A(f"v_permlane16_swap_b32 v{ACC+k}, v{ACC+k+2}")
        for k in range(2): A(f"v_add_f32 v{TM+k}, v{ACC+k}, v{ACC+k+2}")
        A(f"ds_write_b64 v{OA}, v[{TM}:{TM+1}]")
        stage_done()
    A("s_mov_b32 s38, 0")
    A("s_mov_b32 s41, s50")
    A("L_vhead:")
    lds_wait(cW - 16, 4, f"v{CA}", f"v{T}", "s43", "s46")
    A("L_vloop:")
    next_off()
    vstep()
    tick()
    A("s_mov_b32 s41, s42")
    A("s_add_u32 s38, s38, 1")
    A(f"s_cmp_eq_u32 s38, {31 - NP - NL}")
    A("s_cbranch_scc1 L_dyn")
    A("s_and_b32 s43, s38, 7")
    A("s_cbranch_scc1 L_vloop")
    vhead_end()
    for k in range(8): A(f"v_mov_b32 v{ACC+k}, 0")
    A(f"v_add_u32 v{WA}, {SWS - 4096}, v{WA}")
    A(f"v_add_u32 v{OA}, 2048, v{OA}")
    A("s_branch L_vhead")
    def getdesc(n, drain):
        A("s_waitcnt lgkmcnt(0)")
        A(f"v_readfirstlane_b32 s43, v{DV0}")
        A("s_mov_b32 s46, 0x40000")
        A("s_and_b32 s45, s43, 3")
        A("s_lshr_b32 s43, s43, 2")
        A("s_lshl_b32 s43, s43, 3")
        A(f"s_add_u32 s43, s43, {DS0}")
        A(f"v_mov_b32 v{DA}, s43")
        A(f"L_dq{n}:")
        A(f"ds_read_b32 v{DV0}, v{DA}")
        A("s_waitcnt lgkmcnt(0)")
        A(f"v_readfirstlane_b32 s43, v{DV0}")
        A("s_nop 0")
        A("s_cmp_lg_u32 s43, 0")
        A(f"s_cbranch_scc1 L_dq_ok{n}")
        A("s_sub_u32 s46, s46, 1")
        A(f"s_cbranch_scc1 {drain}")
        A("s_sleep 1")
        A(f"s_branch L_dq{n}")
        A(f"L_dq_ok{n}:")
        A("s_cmp_eq_u32 s43, -1")
        A(f"s_cbranch_scc1 {drain}")
        A("s_lshl_b32 s44, s45, 13")
        A("s_add_u32 s42, s43, s44")
        A("s_sub_u32 s42, s42, 1")
    def getw():
        lds_wait(4, 1, f"v{DA}", f"v{DV0}", "s43", "s46", sleep=1)
        A("s_lshl_b32 s45, s45, 7")
        A("s_add_u32 s43, s43, s45")
        A(f"v_add_u32 v{WA}, s43, v{LP}")
    if gc:
        A("L_dyn:")
        for u in range(DV, 8): kvload(u, 28, "s41")
        for n, (X, Yb) in enumerate(((RING, RINGB), (RINGB, RING))):
            A(f"L_dyn{n}:")
            A(f"ds_read_b32 v{W}, v{WA}")
            for u in range(gc):
                A(f"s_waitcnt vmcnt({7-u})")
                if u == 0: A("s_waitcnt lgkmcnt(0)")
                if u == gc - 1:
                    A("s_mov_b64 exec, 1")
                    A(f"ds_add_rtn_u32 v{DV0}, v6, v7 offset:{cQ}")
                    A("s_mov_b64 exec, -1")
                vproc(u, X)
            getdesc(n, f"L_drain{n}")
            for u in range(8): kvload(u, 28, "s42", Yb)
            for u in range(gc, 8):
                A(f"s_waitcnt vmcnt({15-u})")
                vproc(u, X)
            getw()
        A("s_branch L_dyn0")
        for n, X in enumerate((RING, RINGB)):
            A(f"L_drain{n}:")
            for u in range(gc, 8):
                A(f"s_waitcnt vmcnt({7-u})")
                vproc(u, X)
            if n == 0: A("s_branch L_vend")
        A("L_vend:")
        vhead_end()
    else:
        A("L_dyn:")
        A(f"ds_read_b32 v{W}, v{WA}")
        vpart(0, 8 - DV, pull=True)
        getdesc(0, "L_drain")
        vpart(8 - DV, 8)
        getw()
        A("s_mov_b32 s41, s42")
        A("s_branch L_dyn")
        A("L_drain:")
        vpart(8 - DV, 8, drain=True)
        vhead_end()
    if stamps:
        stamp(2)
        if stamps >= 12:
            A("s_waitcnt lgkmcnt(0)")
            A("s_add_u32 s90, s18, 0x20000000\ns_addc_u32 s91, s19, 0")
            A("s_lshl_b32 s37, s2, 7\ns_lshl_b32 s38, s3, 3\ns_add_u32 s37, s37, s38\nv_mov_b32 v9, s37")
            A("v_mov_b32 v10, s74\nv_mov_b32 v11, s75\ns_mov_b64 exec, 1")
            A("global_store_dwordx2 v9, v[10:11], s[90:91] offset:64\ns_mov_b64 exec, -1\ns_nop 1")
        A("s_cmp_lg_u32 s3, 0\ns_cbranch_scc1 L_done")
        if dbgst: dbg_store([(0, "s70", 1), (1, "s70", 0), (2, "s72", 1), (3, "s72", 0), (4, "s74", 1), (5, "s74", 0), (8, "s84", 1), (9, "s84", 0)])
        else: stamp_store(range(min(stamps, 3)))
    A("s_endpgm")

    F0 = 128
    EA, SB, PA, WW, M = 10, 11, 12, 13, 16
    TG = 20
    AC = 24
    BB = 40
    RA = 56
    PV = 88
    G = 56
    A("L_helper:")
    A("s_sub_u32 s22, s3, 4")
    A("v_mov_b32 v8, 0")
    A("v_lshl_add_u32 v9, v0, 2, v6")
    for i in range(4): A(f"ds_write_b32 v9, v8 offset:{256*i}")
    A("s_waitcnt lgkmcnt(0)")
    A("s_barrier")
    A("s_mov_b32 s32, s18\ns_mov_b32 s33, s19\ns_mov_b32 s34, 0x40000000\ns_mov_b32 s35, 0x20000")
    if wsoff:
        A(f"s_add_u32 s32, s32, {wsoff << 20}\ns_addc_u32 s33, s33, 0\ns_mov_b32 s34, {(1024 - wsoff) << 20}")
    A("s_lshl_b32 s47, s21, 8")
    A(f"buffer_load_dword v{TG}, off, s[32:35], s47 sc1")
    A(f"s_add_u32 s68, s47, {WS_C}")
    A("s_or_b32 s43, s20, s22")
    A("s_cbranch_scc1 L_noinit")
    A("s_mov_b64 exec, 1")
    A("buffer_store_dword v8, off, s[32:35], s68 sc1")
    A("s_mov_b64 exec, -1")
    A("L_noinit:")
    A("s_mov_b32 s24, s10\ns_mov_b32 s25, s11\ns_mov_b32 s26, 0x200000\ns_mov_b32 s27, 0x20000")
    A("s_mov_b32 s28, s12\ns_mov_b32 s29, s13\ns_mov_b32 s30, 0x200000\ns_mov_b32 s31, 0x20000")
    A("s_mov_b32 s52, s14\ns_mov_b32 s53, s15\ns_mov_b32 s54, 16384\ns_mov_b32 s55, 0x20000")
    A("s_lshl_b32 s36, s22, 19")
    scat("s37", "s20", MB, -7, "s43")
    A("s_add_u32 s36, s36, s37")
    A("v_and_b32 v8, 1, v4")
    A(f"v_lshlrev_b32 v8, {TB[0]-7}, v8")
    A("v_lshrrev_b32 v9, 1, v4")
    A(f"v_lshlrev_b32 v9, {TB[1]-7}, v9")
    A("v_add_u32 v8, v8, v9")
    A("v_lshl_add_u32 v124, v5, 4, v8")
    A(f"v_add_u32 v125, {1 << (TB[2]-7)}, v124")
    A(f"s_mul_i32 s38, s22, {16*ESTR}")
    if tlb:
        A("s_mov_b32 s64, s6\ns_mov_b32 s65, s7\ns_mov_b32 s66, 0x10000000\ns_mov_b32 s67, 0x20000")
        A("s_mov_b32 s92, s8\ns_mov_b32 s93, s9\ns_mov_b32 s94, 0x10000000\ns_mov_b32 s95, 0x20000")
        A("s_lshl_b32 s44, s21, 24\ns_lshl_b32 s45, s20, 18\ns_add_u32 s44, s44, s45\ns_lshl_b32 s45, s22, 22\ns_add_u32 s44, s44, s45")
    XS = 8192 + 16
    if pf:
        A("s_lshl_b32 s43, s21, 2")
        A("s_add_u32 s43, s43, s22")
        A("s_lshl_b32 s43, s43, 15")
        A("s_add_u32 s43, s43, s37")
        for i, srd in enumerate((24, 28)):
            for hf in range(2):
                if (noe and i == 0) or (nof and i == 1) or (pfsplit and i == 1): continue
                A(f"buffer_load_dwordx4 v[{F0+8*i+4*hf}:{F0+8*i+4*hf+3}], v{124+hf}, s[{srd}:{srd+3}], s43 offen {pfpol}")
        if pfw: A("s_waitcnt vmcnt(0)")
        if pfw > 1: A(f"s_sleep {pfw}")
        A("s_mov_b32 s45, s43")
    if e4:
        A("v_lshlrev_b32 v124, 15, v4")
        A("v_lshl_add_u32 v124, v5, 4, v124")
        A(f"s_mul_i32 s38, s22, {4*XS}")
        for x in range(4):
            for t in range(8):
                A(f"s_add_u32 s43, s36, {x*131072 + scat_c(t, TB, -7)}")
                A(f"s_add_u32 m0, s38, {x*XS + 1024*t}")
                A(f"s_waitcnt vmcnt({hthr-1})")
                if not (noef or noe): A(f"buffer_load_dwordx4 v124, s[24:27], s43 offen {epol} lds")
    for rr in range(0 if e4 else 16):
        if pf and pfsplit == rr + 1:
            for hf in range(2):
                A(f"buffer_load_dwordx4 v[{F0+8+4*hf}:{F0+8+4*hf+3}], v{124+hf}, s[28:31], s45 offen {pfpol}")
        for hf in range(2):
            A(f"s_add_u32 m0, s38, {rr*ESTR + 1024*hf}")
            A(f"s_waitcnt vmcnt({hthr-1 - (1 if ealt and (2*rr+hf) % ealt == 0 else 0)})")
            if not (noef or noe): A(f"buffer_load_dwordx4 v{124+hf}, s[24:27], s36 offen {epol} lds")
        A("s_add_u32 s36, s36, 32768")
    A(f"v_lshlrev_b32 v3, {15 if f4 else 19}, v4")
    A("v_lshl_add_u32 v3, v5, 4, v3")
    A(f"v_add_u32 v126, {1 << (TB[0]-7)}, v3")
    scat("s36", "s22", TB[1:], -7, "s43", add="s37")
    for t in range(16):
        if ftouch and t % ftouch == 0:
            if t == 0:
                A("v_lshlrev_b32 v122, 15, v0")
                A("s_lshl_b32 s44, s22, 19")
                A("v_add_u32 v122, s44, v122")
            A(f"s_mov_b64 exec, {(1 << ftouch) - 1}")
            A("buffer_load_dword v123, v122, s[28:31], s36 offen nt")
            A("s_mov_b64 exec, -1")
        for tau in range(2):
            A(f"s_waitcnt vmcnt({fthr-1 - (1 if falt and (2*t+tau) % falt == 0 else 0)})")
            r = F0 + 64*tau + 4*t
            if not (noef or nof): A(f"buffer_load_dwordx4 v[{r}:{r+3}], v{126 if tau else 3}, s[28:31], s36 offen {fpol}")
        A(f"s_add_u32 s36, s36, {131072 if f4 else 32768}")
    if noef or nof: A("s_waitcnt vmcnt(0)")
    A(f"v_readfirstlane_b32 s56, v{TG}\ns_nop 0")
    A("s_add_u32 s56, s56, 0x01010101")
    for k in range(4):
        A(f"s_bfe_u32 s43, s56, {(8 << 16) | (8*k)}")
        A(f"v_mov_b32 v{TG+k}, s43")
    A("s_mov_b32 s57, 0xffffff00")
    A("s_mov_b32 s58, 0x0c0c0400")
    A("s_mov_b32 s59, 0x04000c0c")
    if e4:
        A(f"s_mul_i32 s36, s22, {4*XS}")
        A("v_lshrrev_b32 v8, 2, v5")
        A(f"v_mul_u32_u24 v{EA}, {XS}, v8")
        A("v_and_b32 v8, 3, v5")
        A(f"v_lshl_add_u32 v{EA}, v8, 8, v{EA}")
    else:
        A(f"s_mul_i32 s36, s22, {16*ESTR}")
        A(f"v_mul_u32_u24 v{EA}, {ESTR}, v5")
    A(f"v_lshl_add_u32 v{EA}, v4, 4, v{EA}")
    A(f"v_add_u32 v{EA}, s36, v{EA}")
    A("v_and_b32 v8, 1, v0")
    A(f"v_mul_u32_u24 v{SB}, {PSTR}, v8")
    A("v_bfe_u32 v8, v0, 1, 1")
    A(f"v_mul_u32_u24 v8, {SWS}, v8")
    A(f"v_add_u32 v{SB}, v{SB}, v8")
    A(f"v_lshl_add_u32 v{SB}, v4, 4, v{SB}")
    A(f"v_add_u32 v{SB}, {SW0}, v{SB}")
    A("v_bfe_u32 v8, v0, 3, 1")
    A(f"v_lshlrev_b32 v{PA}, 8, v8")
    A(f"v_lshl_add_u32 v{PA}, v4, 6, v{PA}")
    A(f"v_add_u32 v{PA}, {PD0}, v{PA}")
    A("v_and_b32 v8, 7, v0")
    A(f"v_lshlrev_b32 v{WW}, 2, v8")
    A(f"v_lshl_add_u32 v{WW}, v4, 7, v{WW}")
    A("s_lshl_b32 s36, s22, 10")
    A(f"v_add_u32 v{WW}, s36, v{WW}")
    A(f"v_add_u32 v{WW}, {SW0}, v{WW}")
    A("v_and_b32 v9, 1, v0")
    A("v_lshlrev_b32 v9, 4, v9")
    A("v_mov_b32 v14, 0xffff")
    A("v_lshlrev_b32 v9, v9, v14")
    A("v_bfe_u32 v8, v0, 1, 2")
    for m in range(4):
        A(f"v_cmp_eq_u32 vcc, {m}, v8")
        A("s_nop 1")
        A(f"v_cndmask_b32 v{M+m}, 0, v9, vcc")
    A("s_lshl_b32 s60, s21, 14")
    A(f"s_add_u32 s60, s60, {WS_SC}")
    A("s_lshl_b32 s61, s21, 15")
    A(f"s_add_u32 s61, s61, {WS_O}")
    if stamps > 4: stamp(4)

    def put_tags(r):
        for k in range(4): A(f"v_and_or_b32 v{r+k}, v{r+k}, s57, v{TG+k}")
    def check_tags(r, t0, t1, dst):
        A(f"v_perm_b32 v{t0}, v{r+1}, v{r}, s58")
        A(f"v_perm_b32 v{t1}, v{r+3}, v{r+2}, s59")
        A(f"v_or_b32 v{t0}, v{t0}, v{t1}")
        A(f"v_cmp_ne_u32 {dst}, s56, v{t0}")

    def epass(a):
        lds_wait(cS + 8*a, 4, "v6", "v8", "s43", "s46", sleep=slp)
        lds_wait(cS + 8*a + 4, 4, "v6", "v8", "s43", "s46", sleep=slp)
        for k in range(4): A(f"v_mov_b32 v{AC+k}, 0")
        for ch in range(8):
            for kk in range(4):
                A(f"ds_read_b128 v[{RA+8*kk}:{RA+8*kk+3}], v{EA} offset:{ch*1024 + kk*64 if e4 else (4*ch+kk)*64}")
                A(f"ds_read_b128 v[{RA+8*kk+4}:{RA+8*kk+7}], v{SB} offset:{2*a*SWS + (4*ch+kk)*64}")
            for kk in range(4):
                A(f"s_waitcnt lgkmcnt({6-2*kk})")
                A(f"v_mfma_f32_16x16x32_bf16 v[{AC}:{AC+3}], v[{RA+8*kk}:{RA+8*kk+3}], v[{RA+8*kk+4}:{RA+8*kk+7}], v[{AC}:{AC+3}]")
        A("s_lshl_b32 s36, s22, 6")
        A("v_bfe_u32 v9, v0, 1, 1")
        A("v_lshlrev_b32 v8, 4, v4")
        A("v_lshl_add_u32 v8, v9, 8, v8")
        A("v_add_u32 v8, s36, v8")
        A(f"v_add_u32 v8, {SC0 + 512*a}, v8")
        A("s_nop 4")
        for k in range(4):
            A(f"v_add_f32_dpp v{AC+4+k}, v{AC+k}, v{AC+k} quad_perm:[1,0,3,2] row_mask:0xf bank_mask:0xf")
        A(f"ds_write_b128 v8, v[{AC+4}:{AC+7}]")
        A("s_mov_b64 exec, 1")
        A(f"ds_add_rtn_u32 v8, v6, v7 offset:{cE + 4*a}")
        A("s_mov_b64 exec, -1")
        A("s_waitcnt lgkmcnt(0)")
        A("v_readfirstlane_b32 s43, v8")
        sk = newlab("nopub")
        A("s_nop 0")
        A(f"s_cmp_lg_u32 s43, 3")
        A(f"s_cbranch_scc1 {sk}")
        A(f"v_add_u32 v9, {SC0 + 512*a}, v2")
        A("s_mov_b32 exec_hi, 0")
        A(f"ds_read_b128 v[{G}:{G+3}], v9")
        A("s_lshl_b32 s38, s20, 9")
        A("s_add_u32 s37, s60, s38")
        A(f"s_add_u32 s37, s37, {8192*a}")
        A("s_waitcnt lgkmcnt(0)")
        put_tags(G)
        if not nosst: A(f"buffer_store_dwordx4 v[{G}:{G+3}], v2, s[32:35], s37 offen {sstpol}")
        A("s_mov_b64 exec, -1")
        A("s_nop 1")
        A(f"{sk}:")

    def pw(a):
        sk = newlab("nop"); oth = newlab("oth"); com = newlab("com")
        A(f"s_cmp_lg_u32 s22, 0")
        A(f"s_cbranch_scc1 {sk}")
        A("s_lshl_b32 s39, s21, 10")
        A(f"s_add_u32 s39, s39, {WS_P + 512*a}")
        A(f"s_add_u32 s43, s21, {8*a}")
        A("s_and_b32 s43, s43, 15")
        A("s_cmp_lg_u32 s43, s20")
        A(f"s_cbranch_scc1 {oth}")
        lds_wait(cT, (tAR, tBR)[a], "v6", "v8", "s43", "s46", sleep=slp)
        A(f"s_add_u32 s37, s60, {8192*a}")
        A("s_add_u32 s38, s37, 4096")
        l = newlab("gp"); d = newlab("gpd")
        A(f"s_mov_b32 s46, {0 if nosst else 0x8000}")
        if nosg: A(f"s_branch {d}")
        A(f"{l}:")
        for i in range(8):
            A(f"buffer_load_dwordx4 v[{G+4*i}:{G+4*i+3}], v2, s[32:35], {'s37' if i < 4 else 's38'} offen offset:{1024*(i%4)} {ldpol}")
        A("s_mov_b64 s[62:63], 0")
        for i in range(8):
            A(f"s_waitcnt vmcnt({7-i})")
            check_tags(G+4*i, 8, 9, "vcc")
            A("s_or_b64 s[62:63], s[62:63], vcc")
        A("s_cmp_eq_u64 s[62:63], 0")
        A(f"s_cbranch_scc1 {d}")
        A("s_sub_u32 s46, s46, 1")
        A(f"s_cbranch_scc1 {d}")
        A(f"s_sleep {gslp}")
        A(f"s_branch {l}")
        A(f"{d}:")
        for k in range(32): A(f"v_and_b32 v{G+k}, s57, v{G+k}")
        for st in (16, 8, 4):
            for k in range(st): A(f"v_add_f32 v{G+k}, v{G+k}, v{G+st+k}")
        for k in range(4): A(f"v_mov_b32 v{G+4+k}, v{G+k}")
        A("s_nop 1")
        for k in range(4): A(f"v_permlane32_swap_b32 v{G+k}, v{G+4+k}")
        for k in range(4): A(f"v_add_f32 v{G+k}, v{G+k}, v{G+4+k}")
        A(f"v_max_f32 v{G+4}, v{G}, v{G+1}")
        A(f"v_max3_f32 v{G+4}, v{G+4}, v{G+2}, v{G+3}")
        for rot in (8, 4, 2, 1):
            A("s_nop 1")
            A(f"v_max_f32_dpp v{G+4}, v{G+4}, v{G+4} row_ror:{rot} row_mask:0xf bank_mask:0xf")
        A("s_mov_b32 s36, 0x3e0293ee")
        for k in range(4):
            A(f"v_sub_f32 v{G+k}, v{G+k}, v{G+4}")
            A(f"v_mul_f32 v{G+k}, s36, v{G+k}")
            A(f"v_exp_f32 v{G+k}, v{G+k}")
        A("s_nop 0")
        A(f"v_add_f32 v{G+4}, v{G}, v{G+1}")
        A(f"v_add_f32 v{G+5}, v{G+2}, v{G+3}")
        A(f"v_add_f32 v{G+4}, v{G+4}, v{G+5}")
        for rot in (8, 4, 2, 1):
            A("s_nop 1")
            A(f"v_add_f32_dpp v{G+4}, v{G+4}, v{G+4} row_ror:{rot} row_mask:0xf bank_mask:0xf")
        A(f"v_rcp_f32 v{G+4}, v{G+4}")
        A("s_nop 0")
        for k in range(4): A(f"v_mul_f32 v{G+k}, v{G+k}, v{G+4}")
        put_tags(G)
        A("s_mov_b32 exec_hi, 0")
        if not nopst: A(f"buffer_store_dwordx4 v[{G}:{G+3}], v2, s[32:35], s39 offen {stpol}")
        A("s_mov_b64 exec, -1")
        A(f"s_branch {com}")
        A(f"{oth}:")
        lds_wait(cT, (tAO, tBO)[a], "v6", "v8", "s43", "s46", sleep=slp)
        A("v_and_b32 v3, 0x1ff, v2")
        l = newlab("pp")
        A(f"s_mov_b32 s46, {0 if nopst else 0x8000}")
        if nopld: A(f"s_branch {com}")
        A(f"{l}:")
        A(f"buffer_load_dwordx4 v[{G}:{G+3}], v3, s[32:35], s39 offen {ldpol}")
        A("s_waitcnt vmcnt(0)")
        check_tags(G, 8, 9, "vcc")
        A("s_cmp_eq_u64 vcc, 0")
        A(f"s_cbranch_scc1 {com}")
        A("s_sub_u32 s46, s46, 1")
        A(f"s_cbranch_scc1 {com}")
        A(f"s_sleep {gslp}")
        A(f"s_branch {l}")
        A(f"{com}:")
        A("v_lshrrev_b32 v8, 5, v0")
        A("v_sub_u32 v9, 0, v8")
        A("v_and_b32 v9, 0xffff0000, v9")
        A("v_mov_b32 v14, 0x03020302")
        for k in range(4):
            A(f"v_and_b32 v{G+4+k}, s57, v{G+k}")
            A(f"v_and_b32 v{G+8}, v{G+4+k}, v9")
            A(f"v_sub_f32 v{G+4+k}, v{G+4+k}, v{G+8}")
            A(f"v_perm_b32 v{G+4+k}, v{G+4+k}, v{G+4+k}, v14")
        A("v_lshlrev_b32 v8, 8, v8")
        A(f"v_lshl_add_u32 v8, v5, {2 if f4 else 4}, v8")
        A("v_and_b32 v9, 1, v4")
        A("v_lshl_add_u32 v8, v9, 9, v8")
        A(f"v_add_u32 v8, {PD0 + 1024*a}, v8")
        if f4:
            for k in range(4): A(f"ds_write_b32 v8, v{G+4+k} offset:{64*k}")
        else:
            A(f"ds_write_b128 v8, v[{G+4}:{G+7}]")
        lds_inc(cP + 4*a, "v6", "v7")
        A(f"{sk}:")
        lds_wait(cP + 4*a, 1, "v6", "v8", "s43", "s46", sleep=slp)
        for hb in range(2):
            for i in range(4):
                A(f"ds_read_b128 v[{PV+16*hb+4*i}:{PV+16*hb+4*i+3}], v{PA} offset:{1024*a + 512*hb + 16*i}")
        for k in range(16): A(f"v_mov_b32 v{AC+k}, 0")
        A("s_waitcnt vmcnt(0) lgkmcnt(0)")
        for t in range(16):
            b = BB + 8*(t % 2)
            for hb in range(2):
                for m in range(4): A(f"v_and_b32 v{b+4*hb+m}, v{PV+16*hb+t}, v{M+m}")
            A("s_nop 0")
            for hb in range(2):
                for tau in range(2):
                    r = F0 + 64*tau + 4*t
                    ac = AC + 8*hb + 4*tau
                    if hb == 1 and tau == 0 and False: A("s_nop 0")
                    A(f"v_mfma_f32_16x16x32_bf16 v[{ac}:{ac+3}], v[{r}:{r+3}], v[{b+4*hb}:{b+4*hb+3}], v[{ac}:{ac+3}]")
        A("s_nop 7\ns_nop 1")
        for k in range(16):
            A(f"v_add_f32_dpp v{RA+k}, v{AC+k}, v{AC+k} row_ror:8 row_mask:0xf bank_mask:0xf")
        for k in range(16):
            hb, tau, rr = k // 8, (k // 4) % 2, k % 4
            A(f"ds_write_b32 v{WW}, v{RA+k} offset:{(2*a+hb)*SWS + tau*512 + rr*32}")
        A("s_mov_b64 exec, 1")
        A(f"ds_add_u32 v6, v7 offset:{cW + 8*a}")
        A(f"ds_add_u32 v6, v7 offset:{cW + 8*a + 4}")
        A("s_mov_b64 exec, -1")
        if a == 1:
            sk2 = newlab("now")
            A(f"s_cmp_lt_u32 s22, {(8 - NP) // 2}")
            A(f"s_cbranch_scc1 {sk2}")
            if wlate: lds_wait(cS + 16 + 4*(wlate - 1), 4, "v6", "v8", "s43", "s46", sleep=slp)
            A("v_and_b32 v8, 8, v0")
            A("v_cmp_ne_u32 vcc, 0, v8")
            A("v_lshlrev_b32 v8, 6, v8")
            A("v_and_b32 v9, 7, v0")
            A("v_lshl_add_u32 v8, v9, 4, v8")
            A("v_lshl_add_u32 v8, v4, 7, v8")
            for k in range(4): A(f"v_cndmask_b32 v{AC+k}, v{RA+8+k}, v{RA+12+k}, vcc")
            put_tags(AC)
            A("s_lshl_b32 s36, s21, 16")
            A("s_lshl_b32 s37, s20, 12")
            A("s_add_u32 s36, s36, s37")
            A("s_lshl_b32 s37, s22, 10")
            A("s_add_u32 s36, s36, s37")
            A(f"s_add_u32 s36, s36, {WS_W}")
            if NP % 2:
                A(f"s_cmp_eq_u32 s22, {(8 - NP) // 2}")
                A("s_cselect_b64 exec, vcc, -1")
            if not nowst: A(f"buffer_store_dwordx4 v[{AC}:{AC+3}], v8, s[32:35], s36 offen {stpol}")
            A("s_mov_b64 exec, -1")
            A(f"{sk2}:")

    epass(0)
    if stamps > 5: stamp(5)
    pw(0)
    if stamps > 6: stamp(6)
    epass(1)
    pw(1)
    if stamps > 7: stamp(7)
    if noo: A("s_endpgm")
    A("s_cmp_eq_u32 s22, 3")
    A("s_cbranch_scc1 L_final")
    A("s_cmp_lt_u32 s22, 2")
    A("s_cbranch_scc1 L_disp")
    A("v_lshrrev_b32 v8, 5, v0")
    A("v_and_b32 v9, 31, v0")
    A("v_lshlrev_b32 v9, 4, v9")
    A("v_lshl_add_u32 v9, v8, 11, v9")
    A(f"v_add_u32 v15, {OB0}, v9")
    A("s_lshl_b32 s38, s20, 11")
    A("s_add_u32 s37, s61, s38")
    def osum(r, off):
        for w in range(4): A(f"ds_read_b128 v[{r+4*w}:{r+4*w+3}], v15 offset:{off + 512*w}")
    def oadd(r):
        A("s_waitcnt lgkmcnt(0)")
        for k in range(4):
            A(f"v_add_f32 v{r+k}, v{r+k}, v{r+4+k}")
            A(f"v_add_f32 v{r+8+k}, v{r+8+k}, v{r+12+k}")
        for k in range(4): A(f"v_add_f32 v{r+k}, v{r+k}, v{r+8+k}")
        put_tags(r)
    if not eo:
        for a in range(2):
            lds_wait(cS + 16 + 8*a, 4, "v6", "v8", "s43", "s46", sleep=slp)
            lds_wait(cS + 16 + 8*a + 4, 4, "v6", "v8", "s43", "s46", sleep=(oslp if a else slp))
            r = G + 16*a
            osum(r, 4096*a)
            if a == 1:
                A(f"buffer_store_dwordx4 v[{G}:{G+3}], v2, s[32:35], s37 offen {stpol}")
            oadd(r)
        A(f"buffer_store_dwordx4 v[{G+16}:{G+19}], v2, s[32:35], s37 offen offset:1024 {stpol}")
    else:
        for h in range(eo): lds_wait(cS + 16 + 4*h, 4, "v6", "v8", "s43", "s46", sleep=slp)
        osum(G, 0)
        oadd(G)
        A(f"buffer_store_dwordx4 v[{G}:{G+3}], v2, s[32:35], s37 offen {stpol}")
        if eo == 3:
            A("s_mov_b32 exec_hi, 0")
            osum(G+16, 4096)
            oadd(G+16)
            A(f"buffer_store_dwordx4 v[{G+16}:{G+19}], v2, s[32:35], s37 offen offset:1024 {stpol}")
            A("s_mov_b64 exec, -1")
        else:
            lds_wait(cS + 24, 4, "v6", "v8", "s43", "s46", sleep=slp)
        lds_wait(cS + 28, 4, "v6", "v8", "s43", "s46", sleep=oslp)
        if eo == 3: A("s_mov_b32 exec_lo, 0")
        osum(G+16, 4096)
        oadd(G+16)
        A(f"buffer_store_dwordx4 v[{G+16}:{G+19}], v2, s[32:35], s37 offen offset:1024 {stpol}")
        A("s_mov_b64 exec, -1")
    if stamps >= 15:
        A("s_memrealtime s[70:71]\ns_waitcnt vmcnt(0)\ns_memrealtime s[72:73]\ns_waitcnt lgkmcnt(0)")
        A("s_add_u32 s90, s18, 0x20000000\ns_addc_u32 s91, s19, 0")
        A("s_lshl_b32 s37, s2, 7\nv_mov_b32 v9, s37")
        A("v_mov_b32 v12, s70\nv_mov_b32 v13, s71\nv_mov_b32 v14, s72\nv_mov_b32 v15, s73\ns_mov_b64 exec, 1")
        A("global_store_dwordx4 v9, v[12:15], s[90:91] offset:96")
    A("s_endpgm")
    A("L_disp:")
    A("s_lshl_b32 s36, s21, 24")
    A("s_xor_b32 s37, s69, 3")
    A("s_lshl_b32 s37, s37, 22")
    A("s_add_u32 s36, s36, s37")
    A("s_add_u32 s36, s36, 1")
    scat("s37", "s20", MB, 0, "s38", add="s36")
    A(f"v_mov_b32 v3, {DS0}")
    A("s_mov_b64 exec, 1")
    for k in range(NL):
        tile = 8 - NP - NL + k
        A(f"s_add_u32 s38, s37, {scat_c(tile, TB, 0)}")
        A("v_mov_b32 v8, s38")
        A(f"v_mov_b32 v9, {SW0 + 3*SWS + tile*512}")
        A(f"ds_write_b64 v3, v[8:9] offset:{8*k}")
    A("s_mov_b64 exec, -1")
    A("s_lshl_b32 s38, s22, 3")
    A(f"s_add_u32 s38, s38, {8*NL - 8}")
    A("v_add_u32 v3, s38, v3")
    A("v_and_b32 v14, 0x1ff, v2")
    A("v_bfe_u32 v8, v0, 3, 2")
    A("v_and_b32 v9, 7, v0")
    A("v_lshlrev_b32 v15, 7, v8")
    A("v_lshl_add_u32 v15, v9, 2, v15")
    A("s_lshl_b32 s39, s21, 16")
    A(f"s_add_u32 s39, s39, {WS_W + (8 - NP)*512}")
    A("s_lshl_b32 s44, s22, 2")
    A(f"s_add_u32 s44, s44, {4*(NL-1) + trig}")
    A("s_lshl_b32 s45, s22, 9")
    A("s_add_u32 s45, s45, 512")
    A("L_dl:")
    lds_wait(cQ, "s44", "v6", "v8", "s43", "s46", sleep=dslp)
    lds_wait(0, 1, "v3", "v8", "s43", "s46", sleep=dslp)
    A("s_cmp_eq_u32 s43, -1")
    A("s_cbranch_scc1 L_dexit")
    A("v_mov_b32 v8, 1")
    A("s_mov_b64 exec, 1")
    A("buffer_atomic_add v8, off, s[32:35], s68 sc0")
    A("s_mov_b64 exec, -1")
    A("s_waitcnt vmcnt(0)")
    A("v_readfirstlane_b32 s43, v8")
    A("s_nop 0")
    A(f"s_cmp_ge_u32 s43, {16*NP}")
    A("s_cbranch_scc1 L_dend")
    A("s_and_b32 s37, s43, 15")
    A("s_lshr_b32 s38, s43, 4")
    A("s_lshl_b32 s42, s37, 12")
    A("s_lshl_b32 s41, s38, 9")
    A("s_add_u32 s42, s42, s41")
    A("s_add_u32 s42, s42, s39")
    if not nowld: A(f"buffer_load_dwordx4 v[{G}:{G+3}], v14, s[32:35], s42 offen {ldpol}")
    A(f"s_add_u32 s38, s38, {8 - NP}")
    scat("s41", "s37", MB, 0, "s43", add="s36")
    scat("s37", "s38", TB, 0, "s43", add="s41")
    A("v_mov_b32 v8, s37")
    A("ds_write_b32 v3, v8 offset:8")
    A(f"s_mov_b32 s46, {0 if nowst else 0x8000}")
    A("L_dw:")
    A("s_waitcnt vmcnt(0)")
    check_tags(G, 8, 9, "vcc")
    A("s_cmp_eq_u64 vcc, 0")
    A("s_cbranch_scc1 L_dw_ok")
    A("s_sub_u32 s46, s46, 1")
    A("s_cbranch_scc1 L_dw_ok")
    A(f"s_sleep {gslp}")
    A(f"buffer_load_dwordx4 v[{G}:{G+3}], v14, s[32:35], s42 offen {ldpol}")
    A("s_branch L_dw")
    A("L_dw_ok:")
    A("v_add_u32 v9, s45, v15")
    for k in range(4):
        A(f"v_and_b32 v{G+k}, s57, v{G+k}")
        A(f"ds_write_b32 v9, v{G+k} offset:{32*k}")
    A("v_mov_b32 v8, s45")
    A("ds_write_b32 v3, v8 offset:12")
    A("v_add_u32 v3, 16, v3")
    A("s_add_u32 s44, s44, 8")
    A("s_add_u32 s45, s45, 1024")
    A("s_branch L_dl")
    A("L_dend:")
    A("v_mov_b32 v8, -1")
    A("ds_write_b32 v3, v8 offset:8")
    A("L_dexit:")
    A("s_cmp_lg_u32 s22, 0")
    A("s_cbranch_scc1 L_done")
    A("L_final:")
    A("v_lshrrev_b32 v8, 2, v0")
    A("v_and_b32 v9, 3, v0")
    A("v_lshlrev_b32 v15, 3, v9")
    A("v_lshlrev_b32 v9, 4, v9")
    A("v_lshl_add_u32 v3, v8, 11, v9")
    A("s_and_b32 s39, s22, 1")
    A("s_lshl_b32 s38, s20, 1")
    A("s_add_u32 s39, s39, s38")
    A("s_lshl_b32 s38, s39, 6")
    A("s_add_u32 s37, s61, s38")
    lds_wait(cS + 28, 4, "v6", "v8", "s43", "s46", sleep=oslp)
    A("s_mov_b64 s[62:63], -1")
    A("s_mov_b32 s46, 0x8000")
    A("L_fpoll:")
    A("s_mov_b64 exec, s[62:63]")
    A(f"buffer_load_dwordx4 v[{G}:{G+3}], v3, s[32:35], s37 offen {ldpol}")
    A("s_mov_b64 exec, -1")
    A("s_waitcnt vmcnt(0)")
    check_tags(G, 8, 9, "s[62:63]")
    A("s_nop 0")
    A("s_bcnt1_i32_b64 s43, s[62:63]")
    A("s_cbranch_scc0 L_fdone")
    A("s_sub_u32 s46, s46, 1")
    A("s_cbranch_scc1 L_fdone")
    A(f"s_cmp_le_u32 s43, {4*fastx}")
    A("s_cbranch_scc1 L_ffast")
    if fslp: A(f"s_sleep {fslp}")
    A("s_branch L_fpoll")
    A("L_ffast:")
    A("s_mov_b64 exec, s[62:63]")
    A(f"buffer_load_dwordx4 v[{G+8}:{G+11}], v3, s[32:35], s37 offen {ldpol}")
    A(f"s_sleep {fdelta}")
    A(f"buffer_load_dwordx4 v[{G+12}:{G+15}], v3, s[32:35], s37 offen {ldpol}")
    A("L_ff:")
    for j in range(2):
        r = G + 8 + 4*j
        A("s_mov_b64 exec, -1")
        A("s_waitcnt vmcnt(1)")
        check_tags(r, 8, 9, "vcc")
        A("s_andn2_b64 exec, s[62:63], vcc")
        for k in range(4): A(f"v_mov_b32 v{G+k}, v{r+k}")
        A("s_and_b64 s[62:63], s[62:63], vcc")
        A("s_cbranch_scc0 L_fdone")
        A("s_mov_b64 exec, s[62:63]")
        A(f"buffer_load_dwordx4 v[{r}:{r+3}], v3, s[32:35], s37 offen {ldpol}")
    A("s_sub_u32 s46, s46, 1")
    A("s_cbranch_scc0 L_ff")
    A("L_fdone:")
    A("s_mov_b64 exec, -1")
    if stamps >= 15: A("s_memrealtime s[86:87]")
    for k in range(4): A(f"v_and_b32 v{G+k}, s57, v{G+k}")
    for rot in (4, 8):
        A("s_nop 1")
        for k in range(4): A(f"v_add_f32_dpp v{G+k}, v{G+k}, v{G+k} row_ror:{rot} row_mask:0xf bank_mask:0xf")
    for sw in ("16", "32"):
        for k in range(4): A(f"v_mov_b32 v{G+4+k}, v{G+k}")
        A("s_nop 1")
        for k in range(4): A(f"v_permlane{sw}_swap_b32 v{G+k}, v{G+4+k}")
        for k in range(4): A(f"v_add_f32 v{G+k}, v{G+k}, v{G+4+k}")
    A(f"v_cvt_pk_bf16_f32 v{G}, v{G}, v{G+1}")
    A(f"v_cvt_pk_bf16_f32 v{G+1}, v{G+2}, v{G+3}")
    A("s_lshl_b32 s36, s21, 10")
    A("s_lshl_b32 s38, s39, 5")
    A("s_lshl_b32 s43, s69, 8")
    A("s_xor_b32 s38, s38, s43")
    A("s_add_u32 s36, s36, s38")
    A("s_mov_b64 exec, 15")
    A(f"buffer_store_dwordx2 v[{G}:{G+1}], v15, s[52:55], s36 offen {opol}")
    A("s_cmp_lg_u32 s39, 0")
    A("s_cbranch_scc1 L_fend")
    A("v_mov_b32 v8, s56")
    A("s_mov_b64 exec, 1")
    A(f"buffer_store_dword v8, off, s[32:35], s47 {eppol}")
    A("L_fend:")
    if hold:
        A("L_hold:\ns_memrealtime s[86:87]\ns_waitcnt lgkmcnt(0)\ns_sub_u32 s86, s86, s70")
        A(f"s_cmp_lt_u32 s86, {hold*100}\ns_cbranch_scc1 L_hold\ns_endpgm")
    if stamps > 3:
        A("s_mov_b64 exec, -1")
        A("s_cmp_lg_u32 s22, 3\ns_cbranch_scc1 L_done")
        A("s_waitcnt vmcnt(0)")
        stamp(3)
        if dbgst:
            dbg_store([(6, "s76", 1), (7, "s76", 0)])
            A("s_endpgm")
        stamp_store(range(3, min(stamps, 8)))
        if stamps >= 15:
            A("v_mov_b32 v10, s86\nv_mov_b32 v11, s87\ns_mov_b64 exec, 1")
            A("global_store_dwordx2 v9, v[10:11], s[90:91] offset:112")
    A("L_done:")
    A("s_endpgm")
    A(f""".section .rodata,"a"
.p2align 6
.amdhsa_kernel {KN}
  .amdhsa_next_free_vgpr 256
  .amdhsa_next_free_sgpr 100
  .amdhsa_accum_offset 256
  .amdhsa_group_segment_fixed_size 0
  .amdhsa_kernarg_size 64
  .amdhsa_user_sgpr_count 2
  .amdhsa_user_sgpr_kernarg_segment_ptr 1
  .amdhsa_system_sgpr_workgroup_id_x 1
  .amdhsa_float_denorm_mode_32 3
.end_amdhsa_kernel""")
    return "\n".join(L) + "\n"

if __name__ == "__main__":
    for spec in sys.argv[1:]:
        path, _, opts = spec.partition(":")
        kw = {}
        for p in filter(None, opts.split(",")):
            k, v = p.split("=")
            kw[k] = int(v) if v.lstrip("-").isdigit() else v
        open(path, "w").write(gen(**kw))
        print(path)
```

```python
import sys
KN = "standalone__low_rank_proj_linformer__decode_kernel"

HEADER = """; Kernarg layout for this problem (64 bytes, ptrs only, base s[0:1]):
"""

DOC = """
; ---------------------------------------------------------------------------------------------
; ---------------------------------------------------------------------------------------------"""

def gen(D=5, DV=6, stamps=0, epol="nt", fpol="nt", hthr=2, prio=0, slp=16, oslp=1, gslp=8, fslp=0,
        stpol="sc1", ldpol="sc1", kvpol="nt", qpol="", nosst=0, nosg=0, noo=0, noef=0, tlb=0, tlbat=2, fthr=None, tAR=24, tAO=27, tBR=36, tBO=40, npoll=4, NP=3, NL=2, dslp=1, trig=4, nowst=0, nowld=0, fastx=16, fdelta=8, noe=0, nof=0, etouch=0, ftouch=0, tb='15.19.20', mb='16.17.18.21', f4=1, e4=0, pf=1, pfpol='', pfw=1, dbgst=0, hold=0, opol='', eppol='', wsoff=0, hx=3, hxs=0, eo=3, wlate=3, nopst=0, nopld=0, sstpol=None, gc=0, pfsplit=0, ealt=0, falt=0, stg=0, sat=0, ub='13.12.14', wb='11.10', US=15, spin=0, pullu=1, sw=1, enc=None, encwg=37, fl=0):
    UB = [int(x) for x in str(ub).split('.')]; WB = [int(x) for x in str(wb).split('.')]
    assert sorted(UB + WB) == list(range(10, 15))
    sstpol = stpol if sstpol is None else sstpol
    TB = [int(x) for x in str(tb).split('.')]; MB = [int(x) for x in str(mb).split('.')]
    assert sorted(TB + MB) == list(range(15, 22))
    fthr = fthr or hthr
    DV = DV or D
    L = []
    A = L.append
    ESTR = 2064
    SW0 = 64 * ESTR
    SWS = 4224
    PSTR = 2112
    OB0 = SW0 + 4 * SWS
    SC0 = OB0 + 8192
    PD0 = SC0 + 1024
    CN0 = PD0 + 2048
    DS0 = CN0 + 128
    NDESC = NL + 16*NP + 1
    LDS = DS0 + 896
    assert NDESC * 8 <= 896 and 1 <= NL and NP + NL <= 6 and NP <= 4
    cS, cE, cP, cW, cT, cQ, cN = 0, 32, 48, 64, 80, 84, 88
    WS_EP = 0
    KS = 1 << (US + 4)
    WS_SC = 1 * KS
    WS_P = 3 * KS
    WS_C = 1 << 12
    WS_W = 4 * KS
    WS_F = 6 * KS
    WS_O = 5 * KS
    lab = [0]
    def newlab(p):
        lab[0] += 1
        return f"L_{p}{lab[0]}"
    def lds_wait(off, target, vaddr, vt, st, sc, sleep=2):
        l = newlab("w"); d = newlab("wd")
        A(f"s_mov_b32 {sc}, 0x40000")
        A(f"{l}:")
        A(f"ds_read_b32 {vt}, {vaddr} offset:{off}")
        A("s_waitcnt lgkmcnt(0)")
        A(f"v_readfirstlane_b32 {st}, {vt}")
        A("s_nop 0")
        A(f"s_cmp_ge_u32 {st}, {target}")
        A(f"s_cbranch_scc1 {d}")
        A(f"s_sub_u32 {sc}, {sc}, 1")
        A(f"s_cbranch_scc1 {d}")
        if sleep: A(f"s_sleep {sleep}")
        A(f"s_branch {l}")
        A(f"{d}:")
    def lds_inc(off, vaddr, vone):
        A("s_mov_b64 exec, 1")
        A(f"ds_add_u32 {vaddr}, {vone} offset:{off}")
        A("s_mov_b64 exec, -1")
    def scat(dst, src, bits, sh, tmp, add=None):
        runs = []
        for i, b in enumerate(bits):
            if runs and runs[-1][1] + runs[-1][2] == b and runs[-1][0] + runs[-1][2] == i: runs[-1][2] += 1
            else: runs.append([i, b, 1])
        cur = add
        for i, b, n in runs:
            t = tmp if cur is not None else dst
            if len(runs) == 1: A(f"s_lshl_b32 {t}, {src}, {b + sh}")
            else:
                A(f"s_bfe_u32 {t}, {src}, {(n << 16) | i}")
                A(f"s_lshl_b32 {t}, {t}, {b + sh}")
            if cur is not None: A(f"s_add_u32 {dst}, {cur}, {t}")
            cur = dst
    scat_c = lambda v, bits, sh: sum(((v >> i) & 1) << (b + sh) for i, b in enumerate(bits))
    def vscat(dst, src, first, bits, sh, tmp, add):
        cur = add
        for i, b in enumerate(bits):
            A(f"v_bfe_u32 {tmp}, {src}, {first + i}, 1")
            A(f"v_lshl_add_u32 {dst}, {tmp}, {b + sh}, {cur}")
            cur = dst
    TG = 20
    def put_tags(r):
        for k in range(4): A(f"v_and_or_b32 v{r+k}, v{r+k}, s57, v{TG+k}")
    def check_tags(r, t0, t1, dst):
        A(f"v_perm_b32 v{t0}, v{r+1}, v{r}, s58")
        A(f"v_perm_b32 v{t1}, v{r+3}, v{r+2}, s59")
        A(f"v_or_b32 v{t0}, v{t0}, v{t1}")
        A(f"v_cmp_ne_u32 {dst}, s56, v{t0}")

    def stamp(i):
        if stamps and i < stamps:
            A(f"s_memrealtime s[{70+2*i}:{71+2*i}]")
    def dbg_store(pairs):
        A("s_waitcnt lgkmcnt(0)")
        A("s_mov_b64 exec, 1")
        for w, sr, inv in pairs:
            A(f"s_and_b32 s43, {sr}, 0xffffff")
            if inv: A("s_xor_b32 s43, s43, 0xffffff")
            A("v_mov_b32 v10, s43")
            A(f"v_mov_b32 v9, {4*w}")
            A("global_atomic_umax v9, v10, s[16:17]")
            A("s_nop 1")
        A("s_mov_b64 exec, -1")
    def stamp_store(idx):
        A("s_waitcnt lgkmcnt(0)")
        A("s_add_u32 s90, s18, 0x20000000\ns_addc_u32 s91, s19, 0")
        A("s_lshl_b32 s37, s2, 7\nv_mov_b32 v9, s37")
        for i in idx:
            A(f"v_mov_b32 v10, s{70+2*i}\nv_mov_b32 v11, s{71+2*i}")
            A("s_mov_b64 exec, 1")
            A(f"global_store_dwordx2 v9, v[10:11], s[90:91] offset:{8*i}")
            A("s_mov_b64 exec, -1")
            A("s_nop 1")

    A(HEADER + f"; @launch grid=(256,1,1) block=(512,1,1) lds={LDS}" + DOC)
    A('.amdgcn_target "amdgcn-amd-amdhsa--gfx950"')
    A(".text")
    A(f".globl {KN}\n.p2align 8\n.type {KN},@function\n{KN}:")
    A("s_cmp_ge_u32 s2, 256")
    A("s_cbranch_scc1 L_done")
    A("s_load_dwordx16 s[4:19], s[0:1], 0")
    stamp(0)
    A("v_lshrrev_b32 v1, 6, v0")
    A("v_and_b32 v0, 63, v0")
    A("v_readfirstlane_b32 s3, v1")
    A("s_and_b32 s20, s2, 15")
    A("s_lshr_b32 s21, s2, 4")
    if hx < 4:
        if hxs: A(f"s_lshr_b32 s69, s21, {hxs}")
        A(f"s_and_b32 s69, {'s69' if hxs else 's21'}, {hx}")
    else:
        tab = {4: [0, 2, 1, 3], 5: [0, 3, 1, 2], 6: [0, 1, 3, 2]}[hx]
        A("s_and_b32 s69, s21, 3")
        A("s_lshl_b32 s69, s69, 1")
        A(f"s_lshr_b32 s69, {sum(v << (2*i) for i, v in enumerate(tab))}, s69")
        A("s_and_b32 s69, s69, 3")
    A("v_lshrrev_b32 v4, 4, v0")
    A("v_and_b32 v5, 15, v0")
    A(f"v_mov_b32 v6, {CN0}")
    A("v_mov_b32 v7, 1")
    A("v_lshlrev_b32 v2, 4, v0")
    A("s_cmp_ge_u32 s3, 4")
    A("s_cbranch_scc1 L_helper")

    RING = 16; Q = 48; P = 64; X0, X1, Y, T = 72, 73, 74, 75
    M2 = 76; SA = 77; WA = 78; W = 79; ACC = 80; TM = 88; OA = 96; CA = 97; LP = 98; DA = 99; DV0 = 100
    CU = lambda u: scat_c(u, UB, 0)
    offs = sorted(set(CU(u) // 4096 * 4096 for u in range(8)))
    AREG = {o: (2 if o == 0 else 136 + i) for i, o in enumerate(offs)}
    for o in offs[1:]: A(f"v_add_u32 v{AREG[o]}, {o}, v2")
    A("v_lshlrev_b32 v8, 4, v5")
    A("s_lshl_b32 s36, s21, 24")
    scat("s36", "s20", MB, 0, "s37", add="s36")
    scat("s36", "s3", WB, 0, "s37", add="s36")
    A("s_lshl_b32 s50, s69, 22")
    A("s_add_u32 s50, s50, s36")
    A("s_lshl_b32 s39, s21, 10")
    for h in range(4):
        A(f"s_xor_b32 s{52+h}, s69, {h}")
        A(f"s_lshl_b32 s{52+h}, s{52+h}, 8")
        A(f"s_add_u32 s{52+h}, s{52+h}, s39")
    A("s_waitcnt lgkmcnt(0)")
    A("s_mov_b32 s24, s6\ns_mov_b32 s25, s7\ns_mov_b32 s26, 0x10000000\ns_mov_b32 s27, 0x20000")
    A("s_mov_b32 s32, s4\ns_mov_b32 s33, s5\ns_mov_b32 s34, 16384\ns_mov_b32 s35, 0x20000")
    RINGB = 104
    def kvload(idx, srd, soff, RING=RING):
        s = idx % 8
        A(f"buffer_load_dwordx4 v[{RING+4*s}:{RING+4*s+3}], v{AREG[CU(s) // 4096 * 4096]}, s[{srd}:{srd+3}], {soff} offen offset:{CU(s) % 4096} {kvpol}")
    for h in range(4):
        A(f"buffer_load_dwordx4 v[{Q+4*h}:{Q+4*h+3}], v8, s[32:35], s{52+h} offen {qpol}")
    for u in range(D): kvload(u, 24, "s50")
    A("s_mov_b32 s28, s8\ns_mov_b32 s29, s9\ns_mov_b32 s30, 0x10000000\ns_mov_b32 s31, 0x20000")
    if prio: A(f"s_setprio {prio}")
    A("v_and_b32 v9, 1, v0")
    A("v_sub_u32 v10, 0, v9")
    A(f"v_and_b32 v{M2}, 0xffff0000, v10")
    A(f"v_mul_u32_u24 v{SA}, {PSTR}, v9")
    scat("s37", "s3", WB, -8, "s43")
    vscat("v10", "v0", 2, UB[:2], -8, "v11", "v4")
    A("v_add_u32 v10, s37, v10")
    A(f"v_lshl_add_u32 v{SA}, v10, 1, v{SA}")
    A(f"v_add_u32 v{SA}, {SW0}, v{SA}")
    vscat("v10", "v0", 0, UB, -8, "v11", "v4")
    A(f"v_lshlrev_b32 v{LP}, 2, v10")
    A("v_add_u32 v10, s37, v10")
    A(f"v_lshlrev_b32 v{WA}, 2, v10")
    A(f"v_add_u32 v{WA}, {SW0}, v{WA}")
    A("v_lshlrev_b32 v10, 5, v5")
    A("v_lshl_add_u32 v10, v4, 3, v10")
    A("s_lshl_b32 s37, s3, 9")
    A("v_add_u32 v10, s37, v10")
    A(f"v_add_u32 v{OA}, {OB0}, v10")
    for k in range(8): A(f"v_mov_b32 v{ACC+k}, 0")
    A(f"v_mov_b32 v{CA}, v6")
    if spin: A("s_mov_b32 s80, 0\ns_mov_b32 s81, 0\ns_mov_b32 s82, 0")
    if stg: A("s_mov_b32 s88, 0\nv_mov_b32 v102, 0")
    A("s_cmp_eq_u32 s3, 0")
    A("s_cselect_b32 s48, 1, 0")
    A("s_mov_b32 s40, 0xffff0000")
    A("s_barrier")
    if dbgst or enc == 8: A(f"s_waitcnt vmcnt({D-1})\ns_memrealtime s[84:85]")
    A("s_mov_b32 s38, 0")
    A("s_mov_b32 s41, s50")

    def next_off():
        A("s_add_u32 s43, s38, 1")
        A("s_lshr_b32 s44, s43, 3")
        A("s_and_b32 s43, s43, 7")
        A("s_xor_b32 s44, s44, s69")
        A("s_lshl_b32 s44, s44, 22")
        A("s_add_u32 s42, s36, s44")
        scat("s42", "s43", TB, 0, "s44", add="s42")
    def tick():
        l = newlab("nt")
        A("s_cmp_eq_u32 s48, 0")
        A(f"s_cbranch_scc1 {l}")
        lds_inc(cT, "v6", "v7")
        A(f"{l}:")
    def stage_done():
        if stg:
            A("s_memrealtime s[86:87]\ns_waitcnt lgkmcnt(0)\ns_mov_b32 m0, s88\ns_nop 0\nv_writelane_b32 v102, s86, m0\ns_add_u32 s88, s88, 1")
        lds_inc(cS, f"v{CA}", "v7")
        A(f"v_add_u32 v{CA}, 4, v{CA}")

    def kstep(cur_srd, nxt_srd, nxt_off, Din, Dout):
        issued = Din
        for u in range(8):
            A(f"s_waitcnt vmcnt({issued - u - 1})")
            want = u + 1 + (Din if u < 7 else Dout) if Din == Dout else u + 1 + Din + (Dout - Din) * (u + 1) // 8
            while issued < want:
                if issued < 8: kvload(issued, cur_srd, "s41")
                else: kvload(issued, nxt_srd, nxt_off)
                issued += 1
            r = RING + 4*u
            A(f"v_dot2_f32_bf16 v{P+u}, v{r}, v{Q}, 0")
            for m in range(1, 4):
                A(f"v_dot2_f32_bf16 v{P+u}, v{r+m}, v{Q+m}, v{P+u}")
            if u % 4 == 3:
                e = u // 4; p = P + 4*e
                A(f"v_add_f32_dpp v{X0}, v{p}, v{p} row_ror:8 row_mask:0xf bank_mask:0x3")
                A(f"v_add_f32_dpp v{X1}, v{p+1}, v{p+1} row_ror:8 row_mask:0xf bank_mask:0x3")
                A("s_nop 0")
                A(f"v_add_f32_dpp v{X0}, v{p+2}, v{p+2} row_ror:8 row_mask:0xf bank_mask:0xc")
                A(f"v_add_f32_dpp v{X1}, v{p+3}, v{p+3} row_ror:8 row_mask:0xf bank_mask:0xc")
                A(f"s_nop 0")
                A(f"v_add_f32_dpp v{Y}, v{X0}, v{X0} row_half_mirror row_mask:0xf bank_mask:0x5")
                A("s_nop 1")
                A(f"v_add_f32_dpp v{Y}, v{X1}, v{X1} row_half_mirror row_mask:0xf bank_mask:0xa")
                A("s_nop 1")
                A(f"v_add_f32_dpp v{Y}, v{Y}, v{Y} quad_perm:[1,0,3,2] row_mask:0xf bank_mask:0xf")
                A("s_nop 1")
                A(f"v_add_f32_dpp v{Y}, v{Y}, v{Y} quad_perm:[2,3,0,1] row_mask:0xf bank_mask:0xf")
                A(f"v_and_b32 v{T}, v{Y}, v{M2}")
                A(f"v_sub_f32 v{T}, v{Y}, v{T}")
                A(f"ds_write_b16_d16_hi v{SA}, v{T} offset:{e << (UB[2] - 7)}")
        assert issued == 8 + Dout
        A(f"v_add_u32 v{SA}, 256, v{SA}")

    A("L_kloop:")
    next_off()
    kstep(24, 24, "s42", D, D)
    tick()
    A("s_mov_b32 s41, s42")
    A("s_add_u32 s38, s38, 1")
    A("s_and_b32 s43, s38, 7")
    A("s_cbranch_scc1 L_knohead")
    stage_done()
    A(f"v_add_u32 v{SA}, {SWS - 2048}, v{SA}")
    for k in range(12): A(f"v_mov_b32 v{Q+k}, v{Q+4+k}")
    A("L_knohead:")
    A("s_cmp_lt_u32 s38, 31")
    A("s_cbranch_scc1 L_kloop")
    kstep(24, 28, "s50", D, DV)
    tick()
    stage_done()
    stamp(1)
    def vproc(u, RING=RING):
        r = RING + 4*u
        for m in range(4):
            A(f"v_lshlrev_b32 v{TM+2*m}, 16, v{r+m}")
            A(f"v_and_b32 v{TM+2*m+1}, s40, v{r+m}")
        for k in range(8):
            A(f"v_fmac_f32_dpp v{ACC+k}, v{W}, v{TM+k} row_newbcast:{u} row_mask:0xf bank_mask:0xf")
    def vpart(u0, u1, drain=False, pull=False):
        for u in range(u0, u1):
            if drain:
                A(f"s_waitcnt vmcnt({7-u})")
            else:
                A(f"s_waitcnt vmcnt({DV-1})")
                if u + DV < 8: kvload(u + DV, 28, "s41")
                else: kvload(u + DV, 28, "s42")
            if u == 0: A("s_waitcnt lgkmcnt(0)")
            if pull and u == (u1 - 1 if pullu is None else pullu):
                A("s_mov_b64 exec, 1")
                A(f"ds_add_rtn_u32 v{DV0}, v6, v7 offset:{cQ}")
                A("s_mov_b64 exec, -1")
            vproc(u)
    def vstep():
        A(f"ds_read_b32 v{W}, v{WA}")
        vpart(0, 8)
        A(f"v_add_u32 v{WA}, 512, v{WA}")
    def vhead_end():
        A("s_nop 1")
        for k in range(4): A(f"v_permlane32_swap_b32 v{ACC+k}, v{ACC+k+4}")
        for k in range(4): A(f"v_add_f32 v{ACC+k}, v{ACC+k}, v{ACC+k+4}")
        A("s_nop 0")
        for k in range(2): A(f"v_permlane16_swap_b32 v{ACC+k}, v{ACC+k+2}")
        for k in range(2): A(f"v_add_f32 v{TM+k}, v{ACC+k}, v{ACC+k+2}")
        A(f"ds_write_b64 v{OA}, v[{TM}:{TM+1}]")
        stage_done()
    A("s_mov_b32 s38, 0")
    A("s_mov_b32 s41, s50")
    A("L_vhead:")
    lds_wait(cW - 16, 4, f"v{CA}", f"v{T}", "s43", "s46")
    A("L_vloop:")
    next_off()
    vstep()
    tick()
    A("s_mov_b32 s41, s42")
    A("s_add_u32 s38, s38, 1")
    A(f"s_cmp_eq_u32 s38, {31 - NP - NL}")
    A("s_cbranch_scc1 L_dyn")
    A("s_and_b32 s43, s38, 7")
    A("s_cbranch_scc1 L_vloop")
    vhead_end()
    for k in range(8): A(f"v_mov_b32 v{ACC+k}, 0")
    A(f"v_add_u32 v{WA}, {SWS - 4096}, v{WA}")
    A(f"v_add_u32 v{OA}, 2048, v{OA}")
    A("s_branch L_vhead")
    def getdesc(n, drain):
        A("s_waitcnt lgkmcnt(0)")
        A(f"v_readfirstlane_b32 s43, v{DV0}")
        A("s_mov_b32 s46, 0x40000")
        A("s_and_b32 s45, s43, 3")
        A("s_lshr_b32 s43, s43, 2")
        A("s_lshl_b32 s43, s43, 3")
        A(f"s_add_u32 s43, s43, {DS0}")
        A(f"v_mov_b32 v{DA}, s43")
        A(f"L_dq{n}:")
        A(f"ds_read_b32 v{DV0}, v{DA}")
        A("s_waitcnt lgkmcnt(0)")
        A(f"v_readfirstlane_b32 s43, v{DV0}")
        A("s_nop 0")
        A("s_cmp_lg_u32 s43, 0")
        A(f"s_cbranch_scc1 L_dq_ok{n}")
        A("s_sub_u32 s46, s46, 1")
        A(f"s_cbranch_scc1 {drain}")
        A("s_sleep 1")
        A(f"s_branch L_dq{n}")
        A(f"L_dq_ok{n}:")
        if spin: A("s_sub_u32 s44, 0x40000, s46\ns_add_u32 s80, s80, s44\ns_add_u32 s82, s82, 1")
        A("s_cmp_eq_u32 s43, -1")
        A(f"s_cbranch_scc1 {drain}")
        scat("s42", "s45", WB, 0, "s44", add="s43")
        A("s_sub_u32 s42, s42, 1")
    def getw():
        lds_wait(4, 1, f"v{DA}", f"v{DV0}", "s43", "s46", sleep=1)
        if spin: A("s_sub_u32 s44, 0x40000, s46\ns_add_u32 s81, s81, s44")
        scat("s43", "s45", WB, -6, "s44", add="s43")
        A(f"v_add_u32 v{WA}, s43, v{LP}")
    if sw:
        WG = 104
        A("L_dyn:")
        A(f"ds_read_b32 v{DV0}, v6 offset:{cN}")
        A("s_mov_b32 s64, s18\ns_mov_b32 s65, s19\ns_mov_b32 s66, 0x40000000\ns_mov_b32 s67, 0x20000")
        if wsoff: A(f"s_add_u32 s64, s64, {wsoff << 20}\ns_addc_u32 s65, s65, 0\ns_mov_b32 s66, {(1024 - wsoff) << 20}")
        A("s_mov_b32 s57, 0xffffff00\ns_mov_b32 s58, 0x0c0c0400\ns_mov_b32 s59, 0x04000c0c")
        A("s_mov_b32 s60, 0xffff0000\ns_mov_b32 s61, 0xffff0000\ns_mov_b32 s62, 0\ns_mov_b32 s63, -1")
        A(f"v_and_b32 v{WG+4}, 7, v0")
        A(f"v_lshlrev_b32 v{WG+4}, 4, v{WG+4}")
        A("s_waitcnt lgkmcnt(0)")
        A(f"v_readfirstlane_b32 s56, v{DV0}")
        def part1(pooled):
            for u in range(8 - DV):
                A(f"s_waitcnt vmcnt({DV-1})")
                kvload(u + DV, 28, "s41")
                if u == 0 and not pooled: A("s_waitcnt lgkmcnt(0)")
                if u == 0 and pooled:
                    A("s_mov_b32 s46, 0x8000")
                    A("L_wchk:")
                    check_tags(WG, WG+5, WG+6, "vcc")
                    A(f"v_cndmask_b32 v{WG+5}, v{WG}, v{WG+1}, s[60:61]")
                    A(f"v_cndmask_b32 v{WG+6}, v{WG+2}, v{WG+3}, s[60:61]")
                    if not nowst:
                        A("s_cmp_lg_u64 vcc, 0")
                        A("s_cbranch_scc1 L_wretry")
                    A("L_wok:")
                    A(f"v_cndmask_b32 v{W}, v{WG+5}, v{WG+6}, s[62:63]")
                    A(f"v_and_b32 v{W}, s57, v{W}")
                if u == pullu:
                    A("s_mov_b64 exec, 1")
                    A(f"ds_add_rtn_u32 v{DV0}, v6, v7 offset:{cQ}")
                    A("s_mov_b64 exec, -1")
                vproc(u)
        A("L_dyn_own:")
        A(f"ds_read_b32 v{W}, v{WA}")
        part1(False)
        A("L_dyn_next:")
        A("s_waitcnt lgkmcnt(0)")
        A(f"v_readfirstlane_b32 s43, v{DV0}")
        A("s_mov_b32 s46, 0x40000")
        A("s_and_b32 s45, s43, 3")
        A("s_lshr_b32 s43, s43, 2")
        A("s_lshl_b32 s43, s43, 3")
        A(f"s_add_u32 s43, s43, {DS0}")
        A(f"v_mov_b32 v{DA}, s43")
        A("L_dq:")
        A(f"ds_read_b64 v[{DV0}:{DV0+1}], v{DA}")
        A("s_waitcnt lgkmcnt(0)")
        A(f"v_readfirstlane_b32 s43, v{DV0}")
        A(f"v_readfirstlane_b32 s51, v{DV0+1}")
        A("s_cmp_lg_u32 s43, 0")
        A("s_cbranch_scc1 L_dq_ok")
        A("s_sub_u32 s46, s46, 1")
        A("s_cbranch_scc1 L_drain")
        A("s_sleep 1")
        A("s_branch L_dq")
        A("L_dq_ok:")
        if spin: A("s_sub_u32 s44, 0x40000, s46\ns_add_u32 s80, s80, s44\ns_add_u32 s82, s82, 1")
        A("s_cmp_eq_u32 s43, -1")
        A("s_cbranch_scc1 L_drain")
        scat("s42", "s45", WB, 0, "s44", add="s43")
        A("s_sub_u32 s42, s42, 1")
        A("s_bitcmp1_b32 s51, 31")
        A("s_cbranch_scc1 L_dyn_pool")
        vpart(8 - DV, 8)
        scat("s43", "s45", WB, -6, "s44", add="s51")
        A(f"v_add_u32 v{WA}, s43, v{LP}")
        A("s_mov_b32 s41, s42")
        A("s_branch L_dyn_own")
        A("L_dyn_pool:")
        A("s_bitset0_b32 s51, 31")
        scat("s51", "s45", [7, US], 0, "s44", add="s51")
        for u in range(8 - DV, 8):
            A(f"s_waitcnt vmcnt({DV-1 if (u == 8 - DV or nowld) else DV})")
            if u == 8 - DV and not nowld: A(f"buffer_load_dwordx4 v[{WG}:{WG+3}], v{WG+4}, s[64:67], s51 offen {ldpol}")
            kvload(u + DV, 28, "s42")
            vproc(u)
        A("s_mov_b32 s41, s42")
        part1(True)
        A("s_branch L_dyn_next")
        A("L_wretry:")
        A("s_sub_u32 s46, s46, 1")
        A("s_cbranch_scc1 L_wok")
        A(f"s_sleep {gslp}")
        A(f"buffer_load_dwordx4 v[{WG}:{WG+3}], v{WG+4}, s[64:67], s51 offen {ldpol}")
        A("s_waitcnt vmcnt(0)")
        A("s_branch L_wchk")
        A("L_drain:")
        vpart(8 - DV, 8, drain=True)
        vhead_end()
    elif gc:
        A("L_dyn:")
        for u in range(DV, 8): kvload(u, 28, "s41")
        for n, (X, Yb) in enumerate(((RING, RINGB), (RINGB, RING))):
            A(f"L_dyn{n}:")
            A(f"ds_read_b32 v{W}, v{WA}")
            for u in range(gc):
                A(f"s_waitcnt vmcnt({7-u})")
                if u == 0: A("s_waitcnt lgkmcnt(0)")
                if u == gc - 1:
                    A("s_mov_b64 exec, 1")
                    A(f"ds_add_rtn_u32 v{DV0}, v6, v7 offset:{cQ}")
                    A("s_mov_b64 exec, -1")
                vproc(u, X)
            getdesc(n, f"L_drain{n}")
            for u in range(8): kvload(u, 28, "s42", Yb)
            for u in range(gc, 8):
                A(f"s_waitcnt vmcnt({15-u})")
                vproc(u, X)
            getw()
        A("s_branch L_dyn0")
        for n, X in enumerate((RING, RINGB)):
            A(f"L_drain{n}:")
            for u in range(gc, 8):
                A(f"s_waitcnt vmcnt({7-u})")
                vproc(u, X)
            if n == 0: A("s_branch L_vend")
        A("L_vend:")
        vhead_end()
    else:
        A("L_dyn:")
        A(f"ds_read_b32 v{W}, v{WA}")
        vpart(0, 8 - DV, pull=True)
        getdesc(0, "L_drain")
        vpart(8 - DV, 8)
        getw()
        A("s_mov_b32 s41, s42")
        A("s_branch L_dyn")
        A("L_drain:")
        vpart(8 - DV, 8, drain=True)
        vhead_end()
    if enc is not None:
        A(f"s_cmp_lg_u32 s3, 0\ns_cbranch_scc1 L_done\ns_cmp_lg_u32 s2, {encwg}\ns_cbranch_scc1 L_done")
        A("s_waitcnt lgkmcnt(0)")
        if enc < 8: A(f"v_readlane_b32 s84, v102, {enc}\ns_nop 3")
        A(f"s_sub_u32 s84, s84, s70\ns_sub_u32 s84, s84, {int(870*(enc+1)) if enc < 8 else 0}\ns_mul_i32 s84, s84, 10\ns_add_u32 s84, s84, 10000")
        A("L_enc:\ns_memrealtime s[86:87]\ns_waitcnt lgkmcnt(0)\ns_sub_u32 s86, s86, s70\ns_cmp_lt_u32 s86, s84\ns_cbranch_scc1 L_enc\ns_endpgm")
    if stamps:
        stamp(2)
        if stamps >= 12:
            A("s_waitcnt lgkmcnt(0)")
            A("s_add_u32 s90, s18, 0x20000000\ns_addc_u32 s91, s19, 0")
            A("s_lshl_b32 s37, s2, 7\ns_lshl_b32 s38, s3, 3\ns_add_u32 s37, s37, s38\nv_mov_b32 v9, s37")
            A("v_mov_b32 v10, s74\nv_mov_b32 v11, s75\ns_mov_b64 exec, 1")
            A("global_store_dwordx2 v9, v[10:11], s[90:91] offset:64\ns_mov_b64 exec, -1\ns_nop 1")
        A("s_cmp_lg_u32 s3, 0\ns_cbranch_scc1 L_done")
        if dbgst: dbg_store([(0, "s70", 1), (1, "s70", 0), (2, "s72", 1), (3, "s72", 0), (4, "s74", 1), (5, "s74", 0), (8, "s84", 1), (9, "s84", 0)])
        else: stamp_store(range(min(stamps, 3)))
        if stamps == 4:
            A("s_getreg_b32 s43, hwreg(HW_REG_XCC_ID)\nv_mov_b32 v10, s43\ns_mov_b64 exec, 1\nglobal_store_dword v9, v10, s[90:91] offset:32\ns_mov_b64 exec, -1")
        if spin:
            A("v_mov_b32 v12, s80\nv_mov_b32 v13, s81\nv_mov_b32 v14, s82\nv_mov_b32 v15, 0\ns_mov_b64 exec, 1\nglobal_store_dwordx4 v9, v[12:15], s[90:91] offset:96\ns_mov_b64 exec, -1")
        if stg:
            A("v_lshl_add_u32 v9, v0, 2, v9\ns_mov_b64 exec, 0xff\nglobal_store_dword v9, v102, s[90:91] offset:64")
    A("s_endpgm")

    F0 = 128
    EA, SB, PA, WW, M = 10, 11, 12, 13, 16
    TG = 20
    UA, UA2 = 120, 121
    AC = 24
    BB = 40
    RA = 56
    PV = 88
    G = 56
    A("L_helper:")
    A("s_sub_u32 s22, s3, 4")
    A("v_mov_b32 v8, 0")
    A("v_lshl_add_u32 v9, v0, 2, v6")
    for i in range(4): A(f"ds_write_b32 v9, v8 offset:{256*i}")
    A("s_waitcnt lgkmcnt(0)")
    A("s_barrier")
    A("s_mov_b32 s32, s18\ns_mov_b32 s33, s19\ns_mov_b32 s34, 0x40000000\ns_mov_b32 s35, 0x20000")
    if wsoff:
        A(f"s_add_u32 s32, s32, {wsoff << 20}\ns_addc_u32 s33, s33, 0\ns_mov_b32 s34, {(1024 - wsoff) << 20}")
    A("s_lshl_b32 s47, s21, 8")
    A(f"buffer_load_dword v{TG}, off, s[32:35], s47 sc1")
    A(f"s_add_u32 s68, s47, {WS_C}")
    A("s_or_b32 s43, s20, s22")
    A("s_cbranch_scc1 L_noinit")
    A("s_mov_b64 exec, 1")
    A("buffer_store_dword v8, off, s[32:35], s68 sc1")
    A("s_mov_b64 exec, -1")
    A("L_noinit:")
    A("s_mov_b32 s24, s10\ns_mov_b32 s25, s11\ns_mov_b32 s26, 0x200000\ns_mov_b32 s27, 0x20000")
    A("s_mov_b32 s28, s12\ns_mov_b32 s29, s13\ns_mov_b32 s30, 0x200000\ns_mov_b32 s31, 0x20000")
    A("s_mov_b32 s52, s14\ns_mov_b32 s53, s15\ns_mov_b32 s54, 16384\ns_mov_b32 s55, 0x20000")
    A("s_lshl_b32 s36, s22, 19")
    scat("s37", "s20", MB, -7, "s43")
    A("s_add_u32 s36, s36, s37")
    A("v_and_b32 v8, 1, v4")
    A(f"v_lshlrev_b32 v8, {TB[0]-7}, v8")
    A("v_lshrrev_b32 v9, 1, v4")
    A(f"v_lshlrev_b32 v9, {TB[1]-7}, v9")
    A("v_add_u32 v8, v8, v9")
    A("v_lshl_add_u32 v124, v5, 4, v8")
    A(f"v_add_u32 v125, {1 << (TB[2]-7)}, v124")
    A(f"s_mul_i32 s38, s22, {16*ESTR}")
    if tlb:
        A("s_mov_b32 s64, s6\ns_mov_b32 s65, s7\ns_mov_b32 s66, 0x10000000\ns_mov_b32 s67, 0x20000")
        A("s_mov_b32 s92, s8\ns_mov_b32 s93, s9\ns_mov_b32 s94, 0x10000000\ns_mov_b32 s95, 0x20000")
        A("s_lshl_b32 s44, s21, 24\ns_lshl_b32 s45, s20, 18\ns_add_u32 s44, s44, s45\ns_lshl_b32 s45, s22, 22\ns_add_u32 s44, s44, s45")
    XS = 8192 + 16
    if pf:
        A("; pull one row of this member's E and F slices into L2 for all 16 groups (one burst chip-wide)")
        A("s_lshl_b32 s43, s21, 2")
        A("s_add_u32 s43, s43, s22")
        A("s_lshl_b32 s43, s43, 15")
        A("s_add_u32 s43, s43, s37")
        for i, srd in enumerate((24, 28)):
            for hf in range(2):
                if (noe and i == 0) or (nof and i == 1) or (pfsplit and i == 1): continue
                A(f"buffer_load_dwordx4 v[{F0+8*i+4*hf}:{F0+8*i+4*hf+3}], v{124+hf}, s[{srd}:{srd+3}], s43 offen {pfpol}")
        if pfw: A("s_waitcnt vmcnt(0)")
        if pfw > 1: A(f"s_sleep {pfw}")
        A("s_mov_b32 s45, s43")
    if e4:
        A("v_lshlrev_b32 v124, 15, v4")
        A("v_lshl_add_u32 v124, v5, 4, v124")
        A(f"s_mul_i32 s38, s22, {4*XS}")
        for x in range(4):
            for t in range(8):
                A(f"s_add_u32 s43, s36, {x*131072 + scat_c(t, TB, -7)}")
                A(f"s_add_u32 m0, s38, {x*XS + 1024*t}")
                A(f"s_waitcnt vmcnt({hthr-1})")
                if not (noef or noe): A(f"buffer_load_dwordx4 v124, s[24:27], s43 offen {epol} lds")
    for rr in range(0 if e4 else 16):
        if pf and pfsplit == rr + 1:
            for hf in range(2):
                A(f"buffer_load_dwordx4 v[{F0+8+4*hf}:{F0+8+4*hf+3}], v{124+hf}, s[28:31], s45 offen {pfpol}")
        for hf in range(2):
            A(f"s_add_u32 m0, s38, {rr*ESTR + 1024*hf}")
            A(f"s_waitcnt vmcnt({hthr-1 - (1 if ealt and (2*rr+hf) % ealt == 0 else 0)})")
            if not (noef or noe): A(f"buffer_load_dwordx4 v{124+hf}, s[24:27], s36 offen {epol} lds")
        A("s_add_u32 s36, s36, 32768")
    A(f"v_lshlrev_b32 v3, {15 if f4 else 19}, v4")
    A("v_lshl_add_u32 v3, v5, 4, v3")
    A(f"v_add_u32 v126, {1 << (TB[0]-7)}, v3")
    scat("s36", "s22", TB[1:], -7, "s43", add="s37")
    for t in range(16):
        if ftouch and t % ftouch == 0:
            if t == 0:
                A("v_lshlrev_b32 v122, 15, v0")
                A("s_lshl_b32 s44, s22, 19")
                A("v_add_u32 v122, s44, v122")
            A(f"s_mov_b64 exec, {(1 << ftouch) - 1}")
            A("buffer_load_dword v123, v122, s[28:31], s36 offen nt")
            A("s_mov_b64 exec, -1")
        for tau in range(2):
            A(f"s_waitcnt vmcnt({fthr-1 - (1 if falt and (2*t+tau) % falt == 0 else 0)})")
            r = F0 + 64*tau + 4*t
            if not (noef or nof): A(f"buffer_load_dwordx4 v[{r}:{r+3}], v{126 if tau else 3}, s[28:31], s36 offen {fpol}")
        A(f"s_add_u32 s36, s36, {131072 if f4 else 32768}")
    if noef or nof: A("s_waitcnt vmcnt(0)")
    A(f"v_readfirstlane_b32 s56, v{TG}\ns_nop 0")
    A("s_add_u32 s56, s56, 0x01010101")
    for k in range(4):
        A(f"s_bfe_u32 s43, s56, {(8 << 16) | (8*k)}")
        A(f"v_mov_b32 v{TG+k}, s43")
    if sw:
        A("v_mov_b32 v8, s56")
        A(f"ds_write_b32 v6, v8 offset:{cN}")
    A("s_mov_b32 s57, 0xffffff00")
    A("s_mov_b32 s58, 0x0c0c0400")
    A("s_mov_b32 s59, 0x04000c0c")
    if e4:
        A(f"s_mul_i32 s36, s22, {4*XS}")
        A("v_lshrrev_b32 v8, 2, v5")
        A(f"v_mul_u32_u24 v{EA}, {XS}, v8")
        A("v_and_b32 v8, 3, v5")
        A(f"v_lshl_add_u32 v{EA}, v8, 8, v{EA}")
    else:
        A(f"s_mul_i32 s36, s22, {16*ESTR}")
        A(f"v_mul_u32_u24 v{EA}, {ESTR}, v5")
    A(f"v_lshl_add_u32 v{EA}, v4, 4, v{EA}")
    A(f"v_add_u32 v{EA}, s36, v{EA}")
    A("v_and_b32 v8, 1, v0")
    A(f"v_mul_u32_u24 v{SB}, {PSTR}, v8")
    A("v_bfe_u32 v8, v0, 1, 1")
    A(f"v_mul_u32_u24 v8, {SWS}, v8")
    A(f"v_add_u32 v{SB}, v{SB}, v8")
    A(f"v_lshl_add_u32 v{SB}, v4, 4, v{SB}")
    A(f"v_add_u32 v{SB}, {SW0}, v{SB}")
    A("v_bfe_u32 v8, v0, 3, 1")
    A(f"v_lshlrev_b32 v{PA}, 8, v8")
    A(f"v_lshl_add_u32 v{PA}, v4, 6, v{PA}")
    A(f"v_add_u32 v{PA}, {PD0}, v{PA}")
    A("v_and_b32 v8, 7, v0")
    A(f"v_lshlrev_b32 v{WW}, 2, v8")
    A(f"v_lshl_add_u32 v{WW}, v4, 7, v{WW}")
    A("s_lshl_b32 s36, s22, 10")
    A(f"v_add_u32 v{WW}, s36, v{WW}")
    A(f"v_add_u32 v{WW}, {SW0}, v{WW}")
    A("v_and_b32 v9, 1, v0")
    A("v_lshlrev_b32 v9, 4, v9")
    A("v_mov_b32 v14, 0xffff")
    A("v_lshlrev_b32 v9, v9, v14")
    A("v_bfe_u32 v8, v0, 1, 2")
    for m in range(4):
        A(f"v_cmp_eq_u32 vcc, {m}, v8")
        A("s_nop 1")
        A(f"v_cndmask_b32 v{M+m}, 0, v9, vcc")
    A("s_and_b32 s60, s21, 7")
    A("s_lshl_b32 s60, s60, 12")
    A("s_lshr_b32 s61, s21, 3")
    A(f"s_lshl_b32 s61, s61, {US + 3}")
    A("s_add_u32 s60, s60, s61")
    A("s_lshl_b32 s61, s20, 8")
    A("s_add_u32 s61, s61, s60")
    A(f"v_lshlrev_b32 v{UA}, {US}, v4")
    A(f"v_lshl_add_u32 v{UA}, v5, 4, v{UA}")
    A(f"v_and_b32 v{UA2}, {(1 << US) + 0xff}, v{UA}")
    if stamps > 4: stamp(4)

    def epass(a):
        A("; ---- scores partial of a pair of heads: E (16 rows per wave) x s (columns = head x hi/lo); last wave publishes ----")
        lds_wait(cS + 8*a, 4, "v6", "v8", "s43", "s46", sleep=slp)
        lds_wait(cS + 8*a + 4, 4, "v6", "v8", "s43", "s46", sleep=slp)
        for k in range(4): A(f"v_mov_b32 v{AC+k}, 0")
        for ch in range(8):
            for kk in range(4):
                A(f"ds_read_b128 v[{RA+8*kk}:{RA+8*kk+3}], v{EA} offset:{ch*1024 + kk*64 if e4 else (4*ch+kk)*64}")
                A(f"ds_read_b128 v[{RA+8*kk+4}:{RA+8*kk+7}], v{SB} offset:{2*a*SWS + (4*ch+kk)*64}")
            for kk in range(4):
                A(f"s_waitcnt lgkmcnt({6-2*kk})")
                A(f"v_mfma_f32_16x16x32_bf16 v[{AC}:{AC+3}], v[{RA+8*kk}:{RA+8*kk+3}], v[{RA+8*kk+4}:{RA+8*kk+7}], v[{AC}:{AC+3}]")
        A("s_lshl_b32 s36, s22, 6")
        A("v_bfe_u32 v9, v0, 1, 1")
        A("v_lshlrev_b32 v8, 4, v4")
        A("v_lshl_add_u32 v8, v9, 8, v8")
        A("v_add_u32 v8, s36, v8")
        A(f"v_add_u32 v8, {SC0 + 512*a}, v8")
        A("s_nop 4")
        for k in range(4):
            A(f"v_add_f32_dpp v{AC+4+k}, v{AC+k}, v{AC+k} quad_perm:[1,0,3,2] row_mask:0xf bank_mask:0xf")
        A(f"ds_write_b128 v8, v[{AC+4}:{AC+7}]")
        A("s_mov_b64 exec, 1")
        A(f"ds_add_rtn_u32 v8, v6, v7 offset:{cE + 4*a}")
        A("s_mov_b64 exec, -1")
        A("s_waitcnt lgkmcnt(0)")
        A("v_readfirstlane_b32 s43, v8")
        sk = newlab("nopub")
        A("s_nop 0")
        A(f"s_cmp_lg_u32 s43, 3")
        A(f"s_cbranch_scc1 {sk}")
        if sat:
            A("v_lshlrev_b32 v8, 2, v0")
            A(f"v_add_u32 v9, {SC0 + 512*a}, v8")
            A(f"ds_read_b32 v{G}, v9")
            A(f"ds_read_b32 v{G+1}, v9 offset:256")
            A(f"s_add_u32 s37, s60, {8192*a}")
            A("s_waitcnt lgkmcnt(0)")
            A(f"buffer_atomic_add_f32 v{G}, v8, s[32:35], s37 offen")
            A(f"buffer_atomic_add_f32 v{G+1}, v8, s[32:35], s37 offen offset:256")
            if sat > 1:
                A("s_waitcnt vmcnt(0)")
                A("v_mov_b32 v9, 1")
                A("s_mov_b64 exec, 1")
                A("buffer_atomic_add v9, off, s[32:35], s37 offset:1024 sc0")
                A("s_mov_b64 exec, -1")
                A("s_waitcnt vmcnt(0)")
            A(f"s_branch {sk}")
        A(f"v_add_u32 v9, {SC0 + 512*a}, v2")
        A("s_mov_b32 exec_hi, 0")
        A(f"ds_read_b128 v[{G}:{G+3}], v9")
        A(f"s_add_u32 s37, s61, {WS_SC + KS*a}")
        A("s_waitcnt lgkmcnt(0)")
        put_tags(G)
        if not nosst: A(f"buffer_store_dwordx4 v[{G}:{G+3}], v{UA}, s[32:35], s37 offen {sstpol}")
        A("s_mov_b64 exec, -1")
        A("s_nop 1")
        A(f"{sk}:")

    def pw(a):
        sk = newlab("nop"); oth = newlab("oth"); com = newlab("com")
        A(f"s_cmp_lg_u32 s22, 0")
        A(f"s_cbranch_scc1 {sk}")
        A(f"s_add_u32 s39, s47, {WS_P + 4096*a}")
        A(f"s_add_u32 s43, s21, {8*a}")
        A("s_and_b32 s43, s43, 15")
        A("s_cmp_lg_u32 s43, s20")
        A(f"s_cbranch_scc1 {oth}")
        lds_wait(cT, (tAR, tBR)[a], "v6", "v8", "s43", "s46", sleep=slp)
        A(f"s_add_u32 s37, s60, {WS_SC + KS*a}")
        A("v_lshrrev_b32 v3, 5, v0")
        A(f"v_lshl_add_u32 v3, v3, 8, v{UA2}")
        l = newlab("gp"); d = newlab("gpd")
        A(f"s_mov_b32 s46, {0 if nosst else 0x8000}")
        if nosg: A(f"s_branch {d}")
        A(f"{l}:")
        for i in range(8):
            A(f"buffer_load_dwordx4 v[{G+4*i}:{G+4*i+3}], v3, s[32:35], s37 offen offset:{512*i} {ldpol}")
        A("s_mov_b64 s[62:63], 0")
        for i in range(8):
            A(f"s_waitcnt vmcnt({7-i})")
            check_tags(G+4*i, 8, 9, "vcc")
            A("s_or_b64 s[62:63], s[62:63], vcc")
        A("s_cmp_eq_u64 s[62:63], 0")
        A(f"s_cbranch_scc1 {d}")
        A("s_sub_u32 s46, s46, 1")
        A(f"s_cbranch_scc1 {d}")
        A(f"s_sleep {gslp}")
        A(f"s_branch {l}")
        A(f"{d}:")
        for k in range(32): A(f"v_and_b32 v{G+k}, s57, v{G+k}")
        for st in (16, 8, 4):
            for k in range(st): A(f"v_add_f32 v{G+k}, v{G+k}, v{G+st+k}")
        for k in range(4): A(f"v_mov_b32 v{G+4+k}, v{G+k}")
        A("s_nop 1")
        for k in range(4): A(f"v_permlane32_swap_b32 v{G+k}, v{G+4+k}")
        for k in range(4): A(f"v_add_f32 v{G+k}, v{G+k}, v{G+4+k}")
        A(f"v_max_f32 v{G+4}, v{G}, v{G+1}")
        A(f"v_max3_f32 v{G+4}, v{G+4}, v{G+2}, v{G+3}")
        for rot in (8, 4, 2, 1):
            A("s_nop 1")
            A(f"v_max_f32_dpp v{G+4}, v{G+4}, v{G+4} row_ror:{rot} row_mask:0xf bank_mask:0xf")
        A("s_mov_b32 s36, 0x3e0293ee")
        for k in range(4):
            A(f"v_sub_f32 v{G+k}, v{G+k}, v{G+4}")
            A(f"v_mul_f32 v{G+k}, s36, v{G+k}")
            A(f"v_exp_f32 v{G+k}, v{G+k}")
        A("s_nop 0")
        A(f"v_add_f32 v{G+4}, v{G}, v{G+1}")
        A(f"v_add_f32 v{G+5}, v{G+2}, v{G+3}")
        A(f"v_add_f32 v{G+4}, v{G+4}, v{G+5}")
        for rot in (8, 4, 2, 1):
            A("s_nop 1")
            A(f"v_add_f32_dpp v{G+4}, v{G+4}, v{G+4} row_ror:{rot} row_mask:0xf bank_mask:0xf")
        A(f"v_rcp_f32 v{G+4}, v{G+4}")
        A("s_nop 0")
        for k in range(4): A(f"v_mul_f32 v{G+k}, v{G+k}, v{G+4}")
        put_tags(G)
        A("s_mov_b32 exec_hi, 0")
        if not nopst: A(f"buffer_store_dwordx4 v[{G}:{G+3}], v{UA}, s[32:35], s39 offen {stpol}")
        A("s_mov_b64 exec, -1")
        A(f"s_branch {com}")
        A(f"{oth}:")
        lds_wait(cT, (tAO, tBO)[a], "v6", "v8", "s43", "s46", sleep=slp)
        l = newlab("pp")
        A(f"s_mov_b32 s46, {0 if nopst else 0x8000}")
        if nopld: A(f"s_branch {com}")
        A(f"{l}:")
        A(f"buffer_load_dwordx4 v[{G}:{G+3}], v{UA2}, s[32:35], s39 offen {ldpol}")
        A("s_waitcnt vmcnt(0)")
        check_tags(G, 8, 9, "vcc")
        A("s_cmp_eq_u64 vcc, 0")
        A(f"s_cbranch_scc1 {com}")
        A("s_sub_u32 s46, s46, 1")
        A(f"s_cbranch_scc1 {com}")
        A(f"s_sleep {gslp}")
        A(f"s_branch {l}")
        A(f"{com}:")
        A("v_lshrrev_b32 v8, 5, v0")
        A("v_sub_u32 v9, 0, v8")
        A("v_and_b32 v9, 0xffff0000, v9")
        A("v_mov_b32 v14, 0x03020302")
        for k in range(4):
            A(f"v_and_b32 v{G+4+k}, s57, v{G+k}")
            A(f"v_and_b32 v{G+8}, v{G+4+k}, v9")
            A(f"v_sub_f32 v{G+4+k}, v{G+4+k}, v{G+8}")
            A(f"v_perm_b32 v{G+4+k}, v{G+4+k}, v{G+4+k}, v14")
        A("v_lshlrev_b32 v8, 8, v8")
        A(f"v_lshl_add_u32 v8, v5, {2 if f4 else 4}, v8")
        A("v_and_b32 v9, 1, v4")
        A("v_lshl_add_u32 v8, v9, 9, v8")
        A(f"v_add_u32 v8, {PD0 + 1024*a}, v8")
        if f4:
            for k in range(4): A(f"ds_write_b32 v8, v{G+4+k} offset:{64*k}")
        else:
            A(f"ds_write_b128 v8, v[{G+4}:{G+7}]")
        lds_inc(cP + 4*a, "v6", "v7")
        A(f"{sk}:")
        lds_wait(cP + 4*a, 1, "v6", "v8", "s43", "s46", sleep=slp)
        for hb in range(2):
            for i in range(4):
                A(f"ds_read_b128 v[{PV+16*hb+4*i}:{PV+16*hb+4*i+3}], v{PA} offset:{1024*a + 512*hb + 16*i}")
        for k in range(16): A(f"v_mov_b32 v{AC+k}, 0")
        A("s_waitcnt vmcnt(0) lgkmcnt(0)")
        for t in range(16):
            b = BB + 8*(t % 2)
            for hb in range(2):
                for m in range(4): A(f"v_and_b32 v{b+4*hb+m}, v{PV+16*hb+t}, v{M+m}")
            A("s_nop 0")
            for hb in range(2):
                for tau in range(2):
                    r = F0 + 64*tau + 4*t
                    ac = AC + 8*hb + 4*tau
                    if hb == 1 and tau == 0 and False: A("s_nop 0")
                    A(f"v_mfma_f32_16x16x32_bf16 v[{ac}:{ac+3}], v[{r}:{r+3}], v[{b+4*hb}:{b+4*hb+3}], v[{ac}:{ac+3}]")
        A("s_nop 7\ns_nop 1")
        for k in range(16):
            A(f"v_add_f32_dpp v{RA+k}, v{AC+k}, v{AC+k} row_ror:8 row_mask:0xf bank_mask:0xf")
        for k in range(16):
            hb, tau, rr = k // 8, (k // 4) % 2, k % 4
            A(f"ds_write_b32 v{WW}, v{RA+k} offset:{(2*a+hb)*SWS + tau*512 + rr*32}")
        A("s_mov_b64 exec, 1")
        A(f"ds_add_u32 v6, v7 offset:{cW + 8*a}")
        A(f"ds_add_u32 v6, v7 offset:{cW + 8*a + 4}")
        A("s_mov_b64 exec, -1")
        if a == 1 and sw:
            sk2 = newlab("now")
            A("s_cmp_lg_u32 s22, 3")
            A(f"s_cbranch_scc1 {sk2}")
            if wlate: lds_wait(cS + 16 + 4*(wlate - 1), 4, "v6", "v8", "s43", "s46", sleep=slp)
            lds_wait(cW + 12, 4, "v6", "v8", "s43", "s46", sleep=slp)
            A("v_lshrrev_b32 v8, 5, v0")
            A("v_lshlrev_b32 v8, 9, v8")
            vscat("v8", "v0", 0, UB, -6, "v9", "v8")
            vscat("v8", "v0", 3, WB, -6, "v9", "v8")
            A(f"v_add_u32 v8, {SW0 + 3*SWS + (8 - NP)*512}, v8")
            for i in range((NP + 1) // 2): A(f"ds_read_b128 v[{AC+4*i}:{AC+4*i+3}], v8 offset:{1024*i}")
            A(f"s_add_u32 s36, s61, {WS_W}")
            A(f"s_add_u32 s37, s36, {4 << US}")
            A("s_waitcnt lgkmcnt(0)")
            for i in range((NP + 1) // 2):
                put_tags(AC + 4*i)
                if 2*i + 1 == NP: A("s_mov_b32 exec_hi, 0")
                if not nowst: A(f"buffer_store_dwordx4 v[{AC+4*i}:{AC+4*i+3}], v{UA}, s[32:35], s{36+i} offen {stpol}")
            A("s_mov_b64 exec, -1")
            A(f"{sk2}:")
        if a == 1 and not sw:
            sk2 = newlab("now")
            A(f"s_cmp_lt_u32 s22, {(8 - NP) // 2}")
            A(f"s_cbranch_scc1 {sk2}")
            if wlate: lds_wait(cS + 16 + 4*(wlate - 1), 4, "v6", "v8", "s43", "s46", sleep=slp)
            A("v_and_b32 v8, 8, v0")
            A("v_cmp_ne_u32 vcc, 0, v8")
            A(f"v_lshlrev_b32 v8, {US + 1 - 3}, v8")
            A("v_and_b32 v9, 7, v0")
            A("v_lshl_add_u32 v8, v9, 4, v8")
            A("v_and_b32 v9, 1, v4")
            A("v_lshl_add_u32 v8, v9, 7, v8")
            A("v_lshrrev_b32 v9, 1, v4")
            A(f"v_lshl_add_u32 v8, v9, {US}, v8")
            for k in range(4): A(f"v_cndmask_b32 v{AC+k}, v{RA+8+k}, v{RA+12+k}, vcc")
            put_tags(AC)
            A("s_sub_u32 s37, s22, 2")
            A(f"s_lshl_b32 s37, s37, {US + 2}")
            A("s_add_u32 s36, s61, s37")
            A(f"s_add_u32 s36, s36, {WS_W}")
            if NP % 2:
                A(f"s_cmp_eq_u32 s22, {(8 - NP) // 2}")
                A("s_cselect_b64 exec, vcc, -1")
            if not nowst: A(f"buffer_store_dwordx4 v[{AC}:{AC+3}], v8, s[32:35], s36 offen {stpol}")
            A("s_mov_b64 exec, -1")
            A(f"{sk2}:")

    epass(0)
    if stamps > 5: stamp(5)
    pw(0)
    if stamps > 6: stamp(6)
    epass(1)
    pw(1)
    if stamps > 7: stamp(7)
    if noo: A("s_endpgm")
    A("s_cmp_eq_u32 s22, 3")
    A("s_cbranch_scc1 L_final")
    A("s_cmp_lt_u32 s22, 2")
    A("s_cbranch_scc1 L_disp")
    A("v_lshrrev_b32 v8, 5, v0")
    A("v_and_b32 v9, 31, v0")
    A("v_lshlrev_b32 v9, 4, v9")
    A("v_lshl_add_u32 v9, v8, 11, v9")
    A(f"v_add_u32 v15, {OB0}, v9")
    A(f"s_add_u32 s37, s61, {WS_O}")
    A(f"s_add_u32 s38, s37, {4 << US}")
    def osum(r, off):
        for w in range(4): A(f"ds_read_b128 v[{r+4*w}:{r+4*w+3}], v15 offset:{off + 512*w}")
    def oadd(r):
        A("s_waitcnt lgkmcnt(0)")
        for k in range(4):
            A(f"v_add_f32 v{r+k}, v{r+k}, v{r+4+k}")
            A(f"v_add_f32 v{r+8+k}, v{r+8+k}, v{r+12+k}")
        for k in range(4): A(f"v_add_f32 v{r+k}, v{r+k}, v{r+8+k}")
        put_tags(r)
    if not eo:
        for a in range(2):
            lds_wait(cS + 16 + 8*a, 4, "v6", "v8", "s43", "s46", sleep=slp)
            lds_wait(cS + 16 + 8*a + 4, 4, "v6", "v8", "s43", "s46", sleep=(oslp if a else slp))
            r = G + 16*a
            osum(r, 4096*a)
            if a == 1:
                A(f"buffer_store_dwordx4 v[{G}:{G+3}], v{UA}, s[32:35], s37 offen {stpol}")
            oadd(r)
        A(f"buffer_store_dwordx4 v[{G+16}:{G+19}], v{UA}, s[32:35], s38 offen {stpol}")
    else:
        for h in range(eo): lds_wait(cS + 16 + 4*h, 4, "v6", "v8", "s43", "s46", sleep=slp)
        osum(G, 0)
        oadd(G)
        A(f"buffer_store_dwordx4 v[{G}:{G+3}], v{UA}, s[32:35], s37 offen {stpol}")
        if eo == 3:
            A("s_mov_b32 exec_hi, 0")
            osum(G+16, 4096)
            oadd(G+16)
            A(f"buffer_store_dwordx4 v[{G+16}:{G+19}], v{UA}, s[32:35], s38 offen {stpol}")
            A("s_mov_b64 exec, -1")
        else:
            lds_wait(cS + 24, 4, "v6", "v8", "s43", "s46", sleep=slp)
        if fl:
            A("s_lshl_b32 s38, s2, 10")
            A(f"s_add_u32 s38, s38, {WS_F}")
            if fl == 7:
                A("v_bfe_u32 v8, v0, 3, 2")
                A("v_and_b32 v14, 7, v0")
                A("v_lshlrev_b32 v14, 4, v14")
                A("v_lshl_add_u32 v14, v8, 8, v14")
            else:
                A("v_and_b32 v14, 0x1ff, v2")
        lds_wait(cS + 28, 4, "v6", "v8", "s43", "s46", sleep=oslp)
        if eo == 3: A("s_mov_b32 exec_lo, 0")
        osum(G+16, 4096)
        oadd(G+16)
        A(f"buffer_store_dwordx4 v[{G+16}:{G+19}], v{14 if fl else UA}, s[32:35], s38 offen {stpol}")
        A("s_mov_b64 exec, -1")
    if stamps >= 15:
        A("s_memrealtime s[70:71]\ns_waitcnt vmcnt(0)\ns_memrealtime s[72:73]\ns_waitcnt lgkmcnt(0)")
        A("s_add_u32 s90, s18, 0x20000000\ns_addc_u32 s91, s19, 0")
        A("s_lshl_b32 s37, s2, 7\nv_mov_b32 v9, s37")
        A("v_mov_b32 v12, s70\nv_mov_b32 v13, s71\nv_mov_b32 v14, s72\nv_mov_b32 v15, s73\ns_mov_b64 exec, 1")
        A("global_store_dwordx4 v9, v[12:15], s[90:91] offset:96")
    A("s_endpgm")
    A("L_disp:")
    A("s_lshl_b32 s36, s21, 24")
    A("s_xor_b32 s37, s69, 3")
    A("s_lshl_b32 s37, s37, 22")
    A("s_add_u32 s36, s36, s37")
    A("s_add_u32 s36, s36, 1")
    scat("s37", "s20", MB, 0, "s38", add="s36")
    A(f"v_mov_b32 v3, {DS0}")
    A("s_mov_b64 exec, 1")
    for k in range(NL):
        tile = 8 - NP - NL + k
        A(f"s_add_u32 s38, s37, {scat_c(tile, TB, 0)}")
        A("v_mov_b32 v8, s38")
        A(f"v_mov_b32 v9, {SW0 + 3*SWS + tile*512}")
        A(f"ds_write_b64 v3, v[8:9] offset:{8*k}")
    A("s_mov_b64 exec, -1")
    A("s_lshl_b32 s38, s22, 3")
    A(f"s_add_u32 s38, s38, {8*NL - 8}")
    A("v_add_u32 v3, s38, v3")
    if not sw:
        A("v_bfe_u32 v8, v0, 3, 2")
        A("v_and_b32 v9, 7, v0")
        A("v_lshlrev_b32 v15, 7, v8")
        A("v_lshl_add_u32 v15, v9, 2, v15")
    A(f"s_add_u32 s39, s60, {WS_W + (0x80000000 if sw else ((4 - NP) << (US + 1)))}")
    A("s_lshl_b32 s44, s22, 2")
    A(f"s_add_u32 s44, s44, {4*(NL-1) + trig}")
    if not sw:
        A("s_lshl_b32 s45, s22, 9")
        A("s_add_u32 s45, s45, 512")
    A("L_dl:")
    lds_wait(cQ, "s44", "v6", "v8", "s43", "s46", sleep=dslp)
    lds_wait(0, 1, "v3", "v8", "s43", "s46", sleep=dslp)
    A("s_cmp_eq_u32 s43, -1")
    A("s_cbranch_scc1 L_dexit")
    A("v_mov_b32 v8, 1")
    A("s_mov_b64 exec, 1")
    A("buffer_atomic_add v8, off, s[32:35], s68 sc0")
    A("s_mov_b64 exec, -1")
    A("s_waitcnt vmcnt(0)")
    A("v_readfirstlane_b32 s43, v8")
    A("s_nop 0")
    A(f"s_cmp_ge_u32 s43, {16*NP}")
    A("s_cbranch_scc1 L_dend")
    A("s_and_b32 s37, s43, 15")
    A("s_lshr_b32 s38, s43, 4")
    A("s_lshl_b32 s42, s37, 8")
    A(f"s_lshl_b32 s41, s38, {US + 1}")
    A("s_add_u32 s42, s42, s41")
    A("s_add_u32 s42, s42, s39")
    if not nowld and not sw: A(f"buffer_load_dwordx4 v[{G}:{G+3}], v{UA2}, s[32:35], s42 offen {ldpol}")
    A(f"s_add_u32 s38, s38, {8 - NP}")
    scat("s41", "s37", MB, 0, "s43", add="s36")
    scat("s37", "s38", TB, 0, "s43", add="s41")
    A("v_mov_b32 v8, s37")
    if sw:
        A("v_mov_b32 v9, s42")
        A("ds_write_b64 v3, v[8:9] offset:8")
        A("v_add_u32 v3, 16, v3")
        A("s_add_u32 s44, s44, 8")
        A("s_branch L_dl")
    if not sw:
        A("ds_write_b32 v3, v8 offset:8")
        A(f"s_mov_b32 s46, {0 if nowst else 0x8000}")
        A("L_dw:")
        A("s_waitcnt vmcnt(0)")
        check_tags(G, 8, 9, "vcc")
        A("s_cmp_eq_u64 vcc, 0")
        A("s_cbranch_scc1 L_dw_ok")
        A("s_sub_u32 s46, s46, 1")
        A("s_cbranch_scc1 L_dw_ok")
        A(f"s_sleep {gslp}")
        A(f"buffer_load_dwordx4 v[{G}:{G+3}], v{UA2}, s[32:35], s42 offen {ldpol}")
        A("s_branch L_dw")
        A("L_dw_ok:")
        A("v_add_u32 v9, s45, v15")
        for k in range(4):
            A(f"v_and_b32 v{G+k}, s57, v{G+k}")
            A(f"ds_write_b32 v9, v{G+k} offset:{32*k}")
        A("v_mov_b32 v8, s45")
        A("ds_write_b32 v3, v8 offset:12")
        A("v_add_u32 v3, 16, v3")
        A("s_add_u32 s44, s44, 8")
        A("s_add_u32 s45, s45, 1024")
        A("s_branch L_dl")
    A("L_dend:")
    A("v_mov_b32 v8, -1")
    A("ds_write_b32 v3, v8 offset:8")
    A("L_dexit:")
    A("s_cmp_lg_u32 s22, 0")
    A("s_cbranch_scc1 L_done")
    A("L_final:")
    A("v_lshrrev_b32 v8, 2, v0")
    A("v_and_b32 v9, 3, v0")
    A("v_lshlrev_b32 v15, 3, v9")
    A("v_lshlrev_b32 v9, 4, v9")
    A("v_lshl_add_u32 v3, v8, 8, v9")
    A("s_and_b32 s39, s22, 1")
    A("s_lshl_b32 s38, s20, 1")
    A("s_add_u32 s39, s39, s38")
    A("s_lshr_b32 s38, s39, 2")
    A(f"s_lshl_b32 s38, s38, {US}")
    A("s_and_b32 s37, s39, 3")
    A("s_lshl_b32 s37, s37, 6")
    A("s_add_u32 s37, s37, s38")
    A("s_add_u32 s37, s37, s60")
    A(f"s_add_u32 s37, s37, {WS_O}")
    if fl:
        A("s_cmp_lt_u32 s39, 24")
        A("s_cbranch_scc1 L_fnorm")
        A("v_lshl_add_u32 v3, v8, 10, v9")
        A("s_lshl_b32 s37, s21, 14")
        A(f"s_add_u32 s37, s37, {WS_F}")
        if fl == 7:
            A("s_bfe_u32 s38, s39, 0x20001")
            A("s_lshl_b32 s38, s38, 8")
            A("s_add_u32 s37, s37, s38")
            A("s_and_b32 s38, s39, 1")
        else:
            A("s_and_b32 s38, s39, 7")
        A("s_lshl_b32 s38, s38, 6")
        A("s_add_u32 s37, s37, s38")
        A("L_fnorm:")
    lds_wait(cS + 28, 4, "v6", "v8", "s43", "s46", sleep=oslp)
    A("s_mov_b64 s[62:63], -1")
    A("s_mov_b32 s46, 0x8000")
    A("L_fpoll:")
    A("s_mov_b64 exec, s[62:63]")
    A(f"buffer_load_dwordx4 v[{G}:{G+3}], v3, s[32:35], s37 offen {ldpol}")
    A("s_mov_b64 exec, -1")
    A("s_waitcnt vmcnt(0)")
    check_tags(G, 8, 9, "s[62:63]")
    A("s_nop 0")
    A("s_bcnt1_i32_b64 s43, s[62:63]")
    A("s_cbranch_scc0 L_fdone")
    A("s_sub_u32 s46, s46, 1")
    A("s_cbranch_scc1 L_fdone")
    A(f"s_cmp_le_u32 s43, {4*fastx}")
    A("s_cbranch_scc1 L_ffast")
    if fslp: A(f"s_sleep {fslp}")
    A("s_branch L_fpoll")
    A("L_ffast:")
    A("s_mov_b64 exec, s[62:63]")
    A(f"buffer_load_dwordx4 v[{G+8}:{G+11}], v3, s[32:35], s37 offen {ldpol}")
    A(f"s_sleep {fdelta}")
    A(f"buffer_load_dwordx4 v[{G+12}:{G+15}], v3, s[32:35], s37 offen {ldpol}")
    A("L_ff:")
    for j in range(2):
        r = G + 8 + 4*j
        A("s_mov_b64 exec, -1")
        A("s_waitcnt vmcnt(1)")
        check_tags(r, 8, 9, "vcc")
        A("s_andn2_b64 exec, s[62:63], vcc")
        for k in range(4): A(f"v_mov_b32 v{G+k}, v{r+k}")
        A("s_and_b64 s[62:63], s[62:63], vcc")
        A("s_cbranch_scc0 L_fdone")
        A("s_mov_b64 exec, s[62:63]")
        A(f"buffer_load_dwordx4 v[{r}:{r+3}], v3, s[32:35], s37 offen {ldpol}")
    A("s_sub_u32 s46, s46, 1")
    A("s_cbranch_scc0 L_ff")
    A("L_fdone:")
    A("s_mov_b64 exec, -1")
    if stamps >= 15: A("s_memrealtime s[86:87]")
    for k in range(4): A(f"v_and_b32 v{G+k}, s57, v{G+k}")
    for rot in (4, 8):
        A("s_nop 1")
        for k in range(4): A(f"v_add_f32_dpp v{G+k}, v{G+k}, v{G+k} row_ror:{rot} row_mask:0xf bank_mask:0xf")
    for sw in ("16", "32"):
        for k in range(4): A(f"v_mov_b32 v{G+4+k}, v{G+k}")
        A("s_nop 1")
        for k in range(4): A(f"v_permlane{sw}_swap_b32 v{G+k}, v{G+4+k}")
        for k in range(4): A(f"v_add_f32 v{G+k}, v{G+k}, v{G+4+k}")
    A(f"v_cvt_pk_bf16_f32 v{G}, v{G}, v{G+1}")
    A(f"v_cvt_pk_bf16_f32 v{G+1}, v{G+2}, v{G+3}")
    A("s_lshl_b32 s36, s21, 10")
    A("s_lshl_b32 s38, s39, 5")
    A("s_lshl_b32 s43, s69, 8")
    A("s_xor_b32 s38, s38, s43")
    A("s_add_u32 s36, s36, s38")
    A("s_mov_b64 exec, 15")
    A(f"buffer_store_dwordx2 v[{G}:{G+1}], v15, s[52:55], s36 offen {opol}")
    A("s_cmp_lg_u32 s39, 0")
    A("s_cbranch_scc1 L_fend")
    A("v_mov_b32 v8, s56")
    A("s_mov_b64 exec, 1")
    A(f"buffer_store_dword v8, off, s[32:35], s47 {eppol}")
    A("L_fend:")
    if hold:
        A("L_hold:\ns_memrealtime s[86:87]\ns_waitcnt lgkmcnt(0)\ns_sub_u32 s86, s86, s70")
        A(f"s_cmp_lt_u32 s86, {hold*100}\ns_cbranch_scc1 L_hold\ns_endpgm")
    if stamps > 3:
        A("s_mov_b64 exec, -1")
        A("s_cmp_lg_u32 s22, 3\ns_cbranch_scc1 L_done")
        A("s_waitcnt vmcnt(0)")
        stamp(3)
        if dbgst:
            dbg_store([(6, "s76", 1), (7, "s76", 0)])
            A("s_endpgm")
        stamp_store(range(3, min(stamps, 8)))
        if stamps >= 15:
            A("v_mov_b32 v10, s86\nv_mov_b32 v11, s87\ns_mov_b64 exec, 1")
            A("global_store_dwordx2 v9, v[10:11], s[90:91] offset:112")
    A("L_done:")
    A("s_endpgm")
    A(f""".section .rodata,"a"
.p2align 6
.amdhsa_kernel {KN}
  .amdhsa_next_free_vgpr 256
  .amdhsa_next_free_sgpr 100
  .amdhsa_accum_offset 256
  .amdhsa_group_segment_fixed_size 0
  .amdhsa_kernarg_size 64
  .amdhsa_user_sgpr_count 2
  .amdhsa_user_sgpr_kernarg_segment_ptr 1
  .amdhsa_system_sgpr_workgroup_id_x 1
  .amdhsa_float_denorm_mode_32 3
.end_amdhsa_kernel""")
    return "\n".join(L) + "\n"

if __name__ == "__main__":
    for spec in sys.argv[1:]:
        path, _, opts = spec.partition(":")
        kw = {}
        for p in filter(None, opts.split(",")):
            k, v = p.split("=")
            kw[k] = int(v) if v.lstrip("-").isdigit() else v
        open(path, "w").write(gen(**kw))
        print(path)
```
